```python
import torch

def _softmax(x, axis=-1):
    return torch.softmax(x, dim=axis)
def _gelu(x):
    return torch.nn.functional.gelu(x, approximate="tanh")
def _silu(x):
    return torch.nn.functional.silu(x)
def _sigmoid(x):
    return torch.sigmoid(x)
def _layernorm(x, axis=-1, eps=1e-5):
    m = x.mean(dim=axis, keepdim=True)
    v = x.var(dim=axis, keepdim=True, unbiased=False)
    return (x - m) / torch.sqrt(v + eps)
def _scatter_add(tgt, idx, src, axis=0):
    return tgt.clone().index_add_(axis, idx, src)
def _segment_sum(src, seg, n):
    out = torch.zeros((n,) + src.shape[1:], dtype=src.dtype)
    return out.index_add_(0, seg, src)
def _pad(x, pw):
    flat = tuple(v for pair in reversed(pw) for v in pair)
    return torch.nn.functional.pad(x, flat)

kernel_name = 'concat_heads__sliding_block_cached__compressed_kv_cla__decode'

def setup_inputs():

    _w = (lambda a: (lambda t: t.to(torch.bfloat16) if t.is_floating_point() else t)(torch.as_tensor(a)))
    def _A_setup():
        B, Sq, D = 4, 1, 512
        Hq, Hkv, Sk, Dh = 32, 32, 4096, 128
        assert Hq % Hkv == 0, (Hq, Hkv)
        return {
            "x": _w((lambda *s: torch.randn(*s, dtype=torch.bfloat16) * 0.8)(B, Sq, D)),
            "k_cache": _w((lambda *s: torch.randn(*s, dtype=torch.bfloat16) * 0.8)(B, Hkv, Sk, Dh)),
            "v_cache": _w((lambda *s: torch.randn(*s, dtype=torch.bfloat16) * 0.05)(B, Hkv, Sk, Dh)),
            "wq": _w((lambda *s: torch.randn(*s, dtype=torch.bfloat16) * 0.8)(D, Hq * Dh) * (D ** -0.5)),
            "wo": _w((lambda *s: torch.randn(*s, dtype=torch.bfloat16) * 0.05)(Hq * Dh, D) * ((Hq * Dh) ** -0.5)),
        }
    _A_in = _A_setup()

    def _B_setup():
        B, H, Sq, Sk, D, M = 4, 32, 1, 4096, 128, 512
        Dc = 4 * D
        return {
            "x": _w((lambda *s: torch.randn(*s, dtype=torch.bfloat16) * 1.6)(B, Sq, M)),
            "c_kv": _w((lambda *s: torch.randn(*s, dtype=torch.bfloat16) * 0.1)(B, Sk, Dc)),
            "w_q": _w((lambda *s: torch.randn(*s, dtype=torch.bfloat16) * 3.2)(M, H, D) * (M ** -0.5)),
            "w_uk": _w((lambda *s: torch.randn(*s, dtype=torch.bfloat16) * 3.2)(Dc, H, D) * (Dc ** -0.5)),
            "w_uv": _w((lambda *s: torch.randn(*s, dtype=torch.bfloat16) * 0.1)(Dc, H, D) * (Dc ** -0.5)),
            "w_o": _w((lambda *s: torch.randn(*s, dtype=torch.bfloat16) * 0.1)(H, D, M) * ((H * D) ** -0.5)),
        }
    _B_in = _B_setup()

    return {
        "A_x": _A_in["x"],
        "A_k_cache": _A_in["k_cache"],
        "A_v_cache": _A_in["v_cache"],
        "A_wq": _A_in["wq"],
        "A_wo": _A_in["wo"],
        "B_x": _B_in["x"],
        "B_c_kv": _B_in["c_kv"],
        "B_w_q": _B_in["w_q"],
        "B_w_uk": _B_in["w_uk"],
        "B_w_uv": _B_in["w_uv"],
        "B_w_o": _B_in["w_o"],
    }

def reference(A_x, A_k_cache, A_v_cache, A_wq, A_wo, B_x, B_c_kv, B_w_q, B_w_uk, B_w_uv, B_w_o):
    def _A_ref(x, k_cache, v_cache, wq, wo):
        B, Sq, D = x.shape
        Hq, Dh = 32, 128
        Hkv, Sk = k_cache.shape[1], k_cache.shape[2]
        W = min(4096, max(256, Sk // 4))
        rep = Hq // Hkv
        q = (lambda x, *d: x.permute(*d))((x @ wq).reshape(B, Sq, Hq, Dh), 0, 2, 1, 3)
        k = (lambda x, n, axis: torch.repeat_interleave(x, n, dim=axis))(k_cache[:, :, Sk - W:, :], rep, axis=1)
        v = (lambda x, n, axis: torch.repeat_interleave(x, n, dim=axis))(v_cache[:, :, Sk - W:, :], rep, axis=1)
        scores = torch.einsum("bhqd,bhkd->bhqk", q, k) * (Dh ** -0.5)
        p = _softmax(scores, axis=-1)
        o = torch.einsum("bhqk,bhkd->bhqd", p, v)
        return (lambda x, *d: x.permute(*d))(o, 0, 2, 1, 3).reshape(B, Sq, Hq * Dh) @ wo

    def _B_ref(x, c_kv, w_q, w_uk, w_uv, w_o):
        B, Sq, M = x.shape[0], x.shape[1], x.shape[2]
        Sk = c_kv.shape[1]
        H, D = w_q.shape[1], w_q.shape[2]
        q = torch.einsum("bqm,mhd->bhqd", x, w_q)
        k = torch.einsum("bkc,chd->bhkd", c_kv, w_uk)
        v = torch.einsum("bkc,chd->bhkd", c_kv, w_uv)
        scores = torch.einsum("bhqd,bhkd->bhqk", q, k) * (D ** -0.5)
        off = Sk - Sq
        qi = torch.arange(Sq)[:, None]
        kj = torch.arange(Sk)[None, :]
        cmask = kj <= (qi + off)
        scores = torch.where(cmask[None, None], scores, -1e9)
        p = _softmax(scores, axis=-1)
        ctx = torch.einsum("bhqk,bhkd->bhqd", p, v)
        return torch.einsum("bhqd,hdm->bqm", ctx, w_o)

    a = _A_ref(A_x, A_k_cache, A_v_cache, A_wq, A_wo)
    b = _B_ref(B_x, B_c_kv, B_w_q, B_w_uk, B_w_uv, B_w_o)
    return torch.concatenate([a, b], axis=-1)
```

```python
import re

_REG = re.compile(r'^(v|s|a)(\d+)$|^(v|s|a)\[(\d+):(\d+)\]$')

TRANS = ('v_exp_f32', 'v_log_f32', 'v_rcp_f32', 'v_rsq_f32', 'v_sqrt_f32', 'v_sin_f32', 'v_cos_f32',
         'v_rcp_iflag_f32')


def regs_of(tok):
    tok = tok.strip()
    neg = tok.lstrip('-')
    if neg.startswith('abs(') or neg.startswith('|'):
        neg = neg.strip('abs()|')
    tok = neg
    if tok == 'vcc':
        return {('s', 106), ('s', 107)}
    if tok == 'vcc_lo':
        return {('s', 106)}
    if tok == 'vcc_hi':
        return {('s', 107)}
    if tok == 'exec':
        return {('s', 126), ('s', 127)}
    if tok == 'm0':
        return {('s', 124)}
    m = _REG.match(tok)
    if not m:
        return set()
    if m.group(1):
        return {(m.group(1), int(m.group(2)))}
    return {(m.group(3), i) for i in range(int(m.group(4)), int(m.group(5)) + 1)}


def split_ops(s):
    ops, depth, cur = [], 0, ''
    for ch in s:
        if ch in '[(':
            depth += 1
        if ch in '])':
            depth -= 1
        if ch == ',' and depth == 0:
            ops.append(cur.strip())
            cur = ''
        else:
            cur += ch
    if cur.strip():
        ops.append(cur.strip())
    return ops


class Ins:
    __slots__ = ('op', 'w', 'r', 'kind', 'passes', 'srcc', 'srcab', 'dpp_src', 'states', 'text', 'store_data',
                 'is_lds_dma', 'sreads')


def mfma_passes(op):
    if '32x32x16' in op or '32x32x8' in op:
        return 8
    if '16x16x32' in op or '16x16x16' in op:
        return 4
    raise ValueError(op)


def parse(text):
    t = text.split(';')[0].strip()
    parts = t.split(None, 1)
    op = parts[0]
    rest = parts[1] if len(parts) > 1 else ''
    ops = split_ops(rest)
    mods = ''
    if ops:
        last = ops[-1].split()
        if len(last) > 1:
            ops[-1] = last[0]
            mods = ' '.join(last[1:])
    i = Ins()
    i.op, i.text = op, text
    i.w, i.r = set(), set()
    i.kind = 'other'
    i.passes = 0
    i.srcc, i.srcab, i.dpp_src, i.store_data = set(), set(), set(), set()
    i.is_lds_dma = False
    i.states = 1
    base = op
    for suf in ('_e32', '_e64', '_dpp', '_sdwa'):
        if base.endswith(suf):
            base = base[:-len(suf)]
    if op == 's_nop':
        i.states = int(ops[0], 0) + 1
        i.kind = 'salu'
        return i
    if op.startswith('s_'):
        i.kind = 'salu'
        nodst = ('s_cmp', 's_waitcnt', 's_branch', 's_cbranch', 's_barrier', 's_sleep', 's_setprio', 's_endpgm',
                 's_bitcmp', 's_setreg', 's_sendmsg')
        if op.startswith(nodst):
            for o in ops:
                i.r |= regs_of(o)
        else:
            if ops:
                i.w |= regs_of(ops[0])
            for o in ops[1:]:
                i.r |= regs_of(o)
            if 'saveexec' in op:
                i.w |= regs_of('exec')
        if op.startswith('s_load') or op.startswith('s_buffer_load') or op.startswith('s_mem'):
            i.kind = 'smem'
        return i
    if op.startswith('v_mfma'):
        i.kind = 'mfma'
        i.passes = mfma_passes(op)
        i.w = regs_of(ops[0])
        i.srcab = regs_of(ops[1]) | regs_of(ops[2])
        i.srcc = regs_of(ops[3])
        i.r = i.srcab | i.srcc
        return i
    if op.startswith('v_'):
        i.kind = 'valu'
        if base in TRANS:
            i.kind = 'trans'
        if base.startswith('v_dot'):
            i.kind = 'dot'
        if base.startswith('v_permlane') and 'swap' in base:
            i.kind = 'perm'
            i.w = regs_of(ops[0]) | regs_of(ops[1])
            i.r = set(i.w)
            return i
        i.w = regs_of(ops[0])
        srcs = ops[1:]
        if base in ('v_add_co_u32', 'v_sub_co_u32', 'v_addc_co_u32', 'v_subb_co_u32', 'v_mad_u64_u32',
                    'v_div_scale_f32'):
            i.w |= regs_of(ops[1])
            srcs = ops[2:]
        for o in srcs:
            i.r |= regs_of(o)
        if base in ('v_fmac_f32', 'v_dot2c_f32_bf16', 'v_pk_fmac_f16', 'v_writelane_b32'):
            i.r |= i.w
        if base == 'v_dot2_f32_bf16':
            i.srcc = regs_of(ops[3])
            i.srcab = regs_of(ops[1]) | regs_of(ops[2])
        if base == 'v_dot2c_f32_bf16':
            i.srcc = set(i.w)
            i.srcab = regs_of(ops[1]) | regs_of(ops[2])
        if op.endswith('_dpp') or 'row_' in mods or 'quad_perm' in mods:
            i.dpp_src = regs_of(ops[1])
            i.r |= i.w
        if base == 'v_cndmask_b32' and len(ops) == 3:
            i.r |= regs_of('vcc')
        return i
    if op.startswith('buffer_') or op.startswith('global_'):
        i.kind = 'vmem'
        if op in ('buffer_wbl2', 'buffer_inv'):
            return i
        ml = mods.split()
        if 'lds' in ml or 'load_lds' in op:
            i.is_lds_dma = True
            for o in ops:
                i.r |= regs_of(o)
            i.r |= regs_of('m0')
            return i
        if 'store' in op:
            for o in ops:
                i.r |= regs_of(o)
            if 'x4' in op or 'x3' in op:
                i.store_data = regs_of(ops[0]) if op.startswith('buffer_') else regs_of(ops[1])
            return i
        if 'atomic' in op:
            for o in ops:
                i.r |= regs_of(o)
            if 'sc0' in ml:
                i.w = regs_of(ops[0])
            return i
        i.w = regs_of(ops[0])
        for o in ops[1:]:
            i.r |= regs_of(o)
        return i
    if op.startswith('ds_'):
        i.kind = 'ds'
        if op.startswith('ds_write') or (('add' in op or 'max' in op or 'min' in op or 'or_' in op)
                                         and 'rtn' not in op):
            for o in ops:
                i.r |= regs_of(o)
            return i
        i.w = regs_of(ops[0])
        for o in ops[1:]:
            i.r |= regs_of(o)
        return i
    raise ValueError('unknown instruction: ' + text)


def vonly(s):
    return {x for x in s if x[0] in 'va'}


def sonly(s):
    return {x for x in s if x[0] == 's'}


def need(p, c):
    n = 0
    pv, ps = vonly(p.w), sonly(p.w)
    valu_like = p.kind in ('valu', 'trans', 'dot', 'perm')
    cvalu = c.kind in ('valu', 'trans', 'dot', 'perm')
    if valu_like:
        if pv & c.dpp_src:
            n = max(n, 2)
        if c.op.startswith(('v_readlane', 'v_readfirstlane')) and pv & c.r:
            n = max(n, 1)
        if c.kind == 'perm' and pv & c.r:
            n = max(n, 2)
        if c.kind == 'mfma' and pv & c.r:
            n = max(n, 2)
        if p.kind == 'trans' and c.kind != 'trans' and pv & (c.r | c.w):
            n = max(n, 1)
        if ps:
            if cvalu and ps & c.r:
                n = max(n, 4 if c.op.startswith(('v_readlane', 'v_writelane')) else 2)
            if c.kind == 'vmem' and ps & c.r:
                n = max(n, 5)
            if c.kind == 'mfma' and ps & c.r:
                n = max(n, 4)
        if p.kind == 'dot' and pv & (c.r | c.w):
            same = c.kind == 'dot' and c.op.split('_e')[0] == p.op.split('_e')[0]
            if same and not (pv & c.srcab):
                pass
            else:
                n = max(n, 3)
    if p.kind == 'mfma':
        big = {4: 8, 8: 12}[p.passes]
        if c.kind == 'mfma':
            if pv & c.srcab:
                n = max(n, big)
            if pv & c.srcc:
                if c.srcc == pv and c.passes == p.passes:
                    pass
                else:
                    n = max(n, p.passes + 2)
            if pv & c.w and not (c.srcc == pv and c.w == pv):
                n = max(n, p.passes + 2)
        elif pv & (c.r | c.w):
            n = max(n, big)
        if cvalu and p.srcc & c.w:
            n = max(n, {4: 3, 8: 7}[p.passes])
    if p.kind == 'salu' and ('s', 124) in p.w and c.is_lds_dma:
        n = max(n, 1)
    if p.store_data and (p.store_data & c.w):
        n = max(n, 2 if cvalu else 1)
    return n


class Asm:
    def __init__(self):
        self.lines = []
        self.hist = []
        self.nuniq = 0
        self.nops = 0

    def comment(self, s):
        self.lines.append('    ; ' + s)

    def raw(self, s):
        self.lines.append(s)

    def label(self, name):
        self.lines.append(name + ':')

    def uniq(self, base='L'):
        self.nuniq += 1
        return '%s_%d' % (base, self.nuniq)

    def fence(self, n=16):
        while n > 0:
            k = min(n, 16)
            self('s_nop %d' % (k - 1))
            n -= k

    def __call__(self, text):
        for t in text.strip().split('\n'):
            t = t.strip()
            if not t or t.startswith(';'):
                continue
            self._one(t)

    def _one(self, t):
        c = parse(t)
        dist = 0
        pad = 0
        for p in reversed(self.hist):
            n = need(p, c)
            if n - dist > pad:
                pad = n - dist
            dist += p.states
            if dist >= 24:
                break
        while pad > 0:
            k = min(pad, 16)
            nop = parse('s_nop %d' % (k - 1))
            self.lines.append('    s_nop %d' % (k - 1))
            self.hist.append(nop)
            self.nops += 1
            pad -= k
        self.lines.append('    ' + t)
        self.hist.append(c)
        if len(self.hist) > 40:
            self.hist = self.hist[-40:]

    def text(self):
        return '\n'.join(self.lines) + '\n'


def vr(base, n=1):
    return 'v%d' % base if n == 1 else 'v[%d:%d]' % (base, base + n - 1)


def sr(base, n=1):
    return 's%d' % base if n == 1 else 's[%d:%d]' % (base, base + n - 1)
```

```python
import sys
import os
import struct
sys.path.insert(0, os.path.dirname(os.path.abspath(__file__)))
from asmlib import Asm, vr

NAME = 'concat_heads__sliding_block_cached__compressed_kv_cla__decode'


class Opt:
    dev = 0
    d1 = 28
    db0 = 28
    db = 32
    spin = 200000
    xmap = 0
    gdela = 10
    ndel = 12
    qs = 120
    n0 = 9
    pret = 1
    qpre = 1
    hq = 148
    aw = 8
    duk = 40
    gdel = 40
    til = 1
    sb = 0
    bh = 1
    eh = 32
    ah = 0
    c1w = 0
    tch = 9
    wqe = 2
    wl2 = 16
    qsl = 1
    fs = 48
    ta0 = 220
    pak = 323232323232
    pav = 242424242424
    te0 = 570
    pek = 31313131
    pev = 27272727
    llo = 20
    lhi = 70
    fa = 0
    tmask = 0x7ffff
    yst = 0
    lhe = 70
    wk = 162432
    wv = 203044
    db1 = 20
    cpf = 1
    dl = 44
    wo1 = 1
    edel = 25
    de1 = 24
    adel = 12
    kv = 6
    fast = 1
    k1 = 6
    na = 6666
    ne = 4444
    ldonly = 0
    bprof = 0
    spread = 0
    flow = 0
    pcl = -1
    pix = 0
    pxc = -1
    probe = 0
    trace = 0


WS_QABS = 0x000000
WS_FLAG = 0x020000
WS_GF = 0x021000
WS_XF = 0x022000
WS_F1 = 0x023000
WS_MLA = 0x024000
WS_ML1 = 0x028000
WS_ML2 = 0x030000
WS_CT2 = 0x200000
WS_QP = 0x100000
WS_YA = 0x280000
WS_YB = 0x2c0000
WS_CD = 0x0c0000
WS_C1 = 0x600000
WS_TS = 0x800000
WS_SIZE = 0x1000000

NSLOT = 16
L_UK = 65536
L_WQ = 98304
QST = 14 * 8192
MISC = 147456
LAND = MISC
FREE = MISC + 256
C_V = MISC + 512
C_NA = MISC + 516
C_QB = MISC + 520
C_SY = MISC + 524
C_MX = MISC + 528
C_O = MISC + 532
C_L2 = MISC + 536
C_CL = MISC + 540
NONA = MISC + 584
QBUF = MISC + 1024
SCB = MISC + 3584
PBA = MISC + 7680
CLAT = MISC + 9728
OB = MISC + 9728
PBUF = MISC + 8192
assert PBUF % 8192 == 0
TML = MISC + 1024
LDS_BYTES = 163840
PWA, K0A = 0, 0
PWE, K0E = 64, 8
PWB = 0
TSLOT = [0, 1, 2, 3, 4, 5, 6, 0, 1, 2, 3, 7, 8, 4, 5, 6]
TSLOTS = sum(x << (4 * i) for i, x in enumerate(TSLOT))

SCALE_LOG2E = 0.08838834764831845 * 1.4426950408889634


def f32bits(x):
    return struct.unpack('<I', struct.pack('<f', x))[0]


P_AX, P_K, P_V, P_WQ, P_WO, P_BX, P_CKV, P_BWQ, P_WUK, P_WUV, P_BWO, P_OUT, P_DBG, P_WS = [8 + 2 * i for i in range(14)]
S_WAVE, S_H, S_R, S_CW = 3, 4, 5, 6
SRD_WS, SRD_DBG, SRD_A, SRD_B, SRD_C, SRD_D = 36, 40, 44, 48, 52, 56
S_T = 60
S_XCC = 78
S_X = 79
S_SPIN = 80
S_SY = 81
S_TS = 82
S_MK, S_MK2, S_MK3, S_MK4 = 84, 86, 88, 90
S_NA = 92
S_NG = 94
S_TAB = 96
S_UNI = 101
V_TS = 167
DPP_ID = 'quad_perm:[0,1,2,3]'


def srd(d):
    return 's[%d:%d]' % (d, d + 3)


def sp(d):
    return 's[%d:%d]' % (d, d + 1)


class Gen:
    def __init__(self, opt):
        self.o = opt
        self.a = Asm()
        self.tail = []
        self.na = [int(c) for c in str(opt.na)]
        self.ne = [int(c) for c in str(opt.ne)]
        self.NA, self.NE = sum(self.na), sum(self.ne)
        assert 4 * self.NA + 2 * self.NE == 128
        assert len(set(self.na)) == 1 and len(set(self.ne)) == 1

    def mk_srd(self, d, p, nbytes):
        a = self.a
        a('s_mov_b32 s%d, s%d' % (d, p))
        a('s_and_b32 s%d, s%d, 0xffff' % (d + 1, p + 1))
        a('s_mov_b32 s%d, 0x%x' % (d + 2, nbytes))
        a('s_mov_b32 s%d, 0x20000' % (d + 3))

    def stamp(self, idx):
        if not self.o.dev:
            return
        a = self.a
        a('s_memrealtime %s' % sp(S_TS))
        a('s_waitcnt lgkmcnt(0)')
        a('v_writelane_b32 v%d, s%d, %d' % (V_TS, S_TS, 2 * idx))
        a('v_writelane_b32 v%d, s%d, %d' % (V_TS, S_TS + 1, 2 * idx + 1))

    def stampd(self, sreg, mul, base):
        if not self.o.dev:
            return
        a = self.a
        a('s_memrealtime %s' % sp(S_TS))
        a('s_mul_i32 s98, s%d, %d' % (sreg, 2 * mul))
        a('s_add_u32 s98, s98, %d' % (2 * base))
        a('s_mov_b32 m0, s98') if False else None
        a('s_waitcnt lgkmcnt(0)')
        a('v_mov_b32 v166, s%d' % S_TS)
        a('v_cmp_eq_u32 vcc, s98, v1')
        a('v_cndmask_b32 v%d, v%d, v166, vcc' % (V_TS, V_TS))
        a('s_add_u32 s98, s98, 1')
        a('v_mov_b32 v166, s%d' % (S_TS + 1))
        a('v_cmp_eq_u32 vcc, s98, v1')
        a('v_cndmask_b32 v%d, v%d, v166, vcc' % (V_TS, V_TS))

    def note(self, idx, sreg):
        if not self.o.dev:
            return
        self.a('v_writelane_b32 v%d, s%d, %d' % (V_TS, sreg, 2 * idx))

    def timeout(self):
        if not self.o.trace:
            return
        a = self.a
        self.nsite = getattr(self, 'nsite', 0) + 1
        import traceback
        st = [f for f in traceback.extract_stack() if f.name not in ('timeout', 'poll', 'mpoll', 'retry', 'lds_wait')]
        print('site', self.nsite, [(f.name, f.lineno) for f in st[-3:]], getattr(self, 'site_note', ''))
        a('s_mov_b64 s[98:99], exec')
        a('s_mov_b64 exec, 1')
        a('s_lshl_b32 s100, s%d, 8' % S_WAVE)
        a('s_or_b32 s100, s100, s2')
        a('s_bitset1_b32 s100, 31')
        a('v_mov_b32 v166, s100')
        a('v_mov_b32 v167, 0x%x' % (0x900000 + 4 * self.nsite))
        a('global_store_dword v167, v166, %s sc1' % sp(P_WS))
        a('s_mov_b64 exec, s[98:99]')

    def end(self):
        a = self.a
        a('s_branch L_FIN' if self.o.dev else 's_endpgm')

    def lds_add(self, addr, va, vb, val=1, lanes=1, drain=True):
        a = self.a
        if isinstance(addr, int):
            if lanes == 1:
                a('v_mov_b32 v%d, 0x%x' % (va, addr))
            else:
                a('v_lshlrev_b32 v%d, 2, v1' % va)
                a('v_add_u32 v%d, 0x%x, v%d' % (va, addr, va))
        else:
            if lanes == 1:
                a('v_mov_b32 v%d, s%d' % (va, addr[1]))
            else:
                a('v_lshl_add_u32 v%d, v1, 2, s%d' % (va, addr[1]))
        a('v_mov_b32 v%d, %s' % (vb, val))
        if drain:
            a('s_waitcnt lgkmcnt(0)')
        a('s_mov_b64 exec, %d' % ((1 << lanes) - 1))
        a('ds_add_u32 v%d, v%d' % (va, vb))
        a('s_mov_b64 exec, -1')

    def lds_wait(self, addr, target, va, vb, sleep=1):
        a = self.a
        L, Ld = a.uniq('LW'), a.uniq('LWD')
        a('v_mov_b32 v%d, %s' % (va, addr if isinstance(addr, str) else '0x%x' % addr))
        a('s_mov_b32 s%d, %d' % (S_SPIN, self.o.spin * 8))
        a.label(L)
        a('ds_read_b32 v%d, v%d' % (vb, va))
        a('s_waitcnt lgkmcnt(0)')
        a('v_readfirstlane_b32 s%d, v%d' % (S_X, vb))
        a('s_cmp_ge_u32 s%d, %s' % (S_X, target))
        a('s_cbranch_scc1 %s' % Ld)
        if sleep:
            a('s_sleep %d' % sleep)
        a('s_sub_u32 s%d, s%d, 1' % (S_SPIN, S_SPIN))
        a('s_cmp_lg_u32 s%d, 0' % S_SPIN)
        a('s_cbranch_scc1 %s' % L)
        self.timeout()
        a.label(Ld)

    def sync(self, va, vb, n=8):
        a = self.a
        a('s_add_u32 s%d, s%d, %d' % (S_SY, S_SY, n))
        self.lds_add(C_SY, va, vb, drain=False)
        self.lds_wait(C_SY, 's%d' % S_SY, va, vb, sleep=0)

    def get_nonce(self, which, va):
        a = self.a
        c, n, s = C_NA, NONA, S_NA
        if self.o.ldonly:
            a('v_mov_b32 v%d, 0' % (va + 2))
            a('v_mov_b32 v%d, 0' % (va + 3))
            return
        self.lds_wait(c, 1, va, va + 1, sleep=1)
        a('v_mov_b32 v%d, 0x%x' % (va, n))
        a('ds_read_b64 v[%d:%d], v%d' % (va + 2, va + 3, va))
        a('s_waitcnt lgkmcnt(0)')
        a('v_readfirstlane_b32 s%d, v%d' % (s, va + 2))
        a('v_readfirstlane_b32 s%d, v%d' % (s + 1, va + 3))

    def tags_bad(self, tagregs, non):
        a = self.a
        for i, t in enumerate(tagregs):
            if i == 0:
                a('v_cmp_ne_u64 %s, %s, v[%d:%d]' % (sp(S_MK4), sp(non), t, t + 1))
            else:
                a('v_cmp_ne_u64 vcc, %s, v[%d:%d]' % (sp(non), t, t + 1))
                a('s_or_b64 %s, %s, vcc' % (sp(S_MK4), sp(S_MK4)))
        a('s_cmp_lg_u64 %s, 0' % sp(S_MK4))

    def poll(self, loads, check, sleep, first_issued=False):
        a = self.a
        L, L2, Ld = a.uniq('P'), a.uniq('PP'), a.uniq('PD')
        if not first_issued:
            a('s_mov_b32 s%d, %d' % (S_SPIN, self.o.spin))
        else:
            a('s_mov_b32 s%d, %d' % (S_SPIN, self.o.spin))
            a('s_branch %s' % L2)
        a.label(L)
        loads()
        a.label(L2)
        a('s_waitcnt vmcnt(0)')
        check()
        a('s_cbranch_scc0 %s' % Ld)
        if sleep:
            a('s_sleep %d' % sleep)
        a('s_sub_u32 s%d, s%d, 1' % (S_SPIN, S_SPIN))
        a('s_cmp_lg_u32 s%d, 0' % S_SPIN)
        a('s_cbranch_scc1 %s' % L)
        self.timeout()
        a.label(Ld)

    def st2(self, texts):
        a = self.a
        if not self.o.fast:
            for x in texts:
                a(x + ' sc1' if x.startswith('buffer') else x)
            return
        L1, L2 = a.uniq('SU'), a.uniq('SV')
        a('s_cmp_eq_u32 s%d, 0' % S_UNI)
        a('s_cbranch_scc1 %s' % L1)
        for x in texts:
            a(x)
        a.label(L2)

        def slow():
            a.label(L1)
            a.fence(4)
            for x in texts:
                a(x + ' sc1' if x.startswith('buffer') else x)
            a('s_branch %s' % L2)
        self.tail.append(slow)

    def verdict(self, va, vb, sleep=1):
        self.lds_wait(C_V, 16, va, vb, sleep=sleep)
        self.a('s_and_b32 s%d, s%d, 15' % (S_UNI, S_X))

    def wave_tab(self, wreg, sb, sstart, sn):
        a = self.a
        a('s_lshl_b32 s7, s%d, 4' % wreg)
        a('s_lshr_b64 %s, %s, s7' % (sp(S_MK4), sp(S_TAB)))
        a('s_and_b32 s%d, s%d, 3' % (sb, S_MK4))
        a('s_bfe_u32 s%d, s%d, 0x50002' % (sstart, S_MK4))
        if sn is not None:
            a('s_bfe_u32 s%d, s%d, 0x40008' % (sn, S_MK4))

    def load_tab(self):
        import itertools
        a = self.a
        ns = [self.na] * 4 + [self.ne] * 2

        def solve(r, tot):
            if r == 6:
                return [] if tot == [32] * 4 else None
            for p in itertools.permutations(range(4)):
                t2 = list(tot)
                for w in range(4):
                    t2[p[w]] += ns[r][w]
                if max(t2) - min(t2) > 1:
                    continue
                s = solve(r + 1, t2)
                if s is not None:
                    return [p] + s
            return None
        perm = solve(0, [0] * 4)
        nxt = [0] * 4
        tabs = []
        for r in range(6):
            t = 0
            for w in range(4):
                b = perm[r][w]
                t |= (b | nxt[b] << 2 | ns[r][w] << 8) << (16 * w)
                nxt[b] += ns[r][w]
            tabs.append(t)
        for k in range(2):
            a('s_mov_b32 s%d, 0x%x' % (S_TAB + k, (tabs[0] >> (32 * k)) & 0xffffffff))
        for r in range(1, 6):
            a('s_cmp_eq_u32 s%d, %d' % (S_R, r))
            for k in range(2):
                a('s_cselect_b32 s%d, 0x%x, s%d' % (S_TAB + k, (tabs[r] >> (32 * k)) & 0xffffffff, S_TAB + k))

    def mpoll(self, n, load, tag, ms, sleep, non=S_NA, base='-1', first=None, limit=None, bad=None):
        a = self.a
        L, Lc, Ld = a.uniq('M'), a.uniq('MC'), a.uniq('MD')
        import traceback
        note = str([(f.name, f.lineno) for f in traceback.extract_stack()[-3:-1]])
        a('s_mov_b64 exec, %s' % base)
        for i in range(n):
            load(i)
        if first:
            first()
        a('s_mov_b32 s%d, %d' % (S_SPIN, self.o.spin))
        a.label(Lc)
        a('s_mov_b64 exec, %s' % base)
        a('s_waitcnt vmcnt(0)')
        for i in range(n):
            if bad:
                bad(i, ms + 2 * i)
            else:
                a('v_cmp_ne_u64 %s, %s, v[%d:%d]' % (sp(ms + 2 * i), sp(non), tag(i), tag(i) + 1))
        if n == 1:
            a('s_cmp_lg_u64 %s, 0' % sp(ms))
        else:
            a('s_or_b64 %s, %s, %s' % (sp(S_MK4), sp(ms), sp(ms + 2)))
        for i in range(2, n):
            a('s_or_b64 %s, %s, %s' % (sp(S_MK4), sp(S_MK4), sp(ms + 2 * i)))
        a('s_cbranch_scc1 %s' % L)
        a.label(Ld)
        a('s_mov_b64 exec, -1')

        def retry():
            a.label(L)
            if sleep:
                a('s_sleep %d' % sleep)
            a('s_sub_u32 s%d, s%d, 1' % (S_SPIN, S_SPIN))
            a('s_cmp_le_u32 s%d, %d' % (S_SPIN, self.o.spin - limit[0] if limit else 0))
            if self.o.trace and not limit:
                Lt = a.uniq('TO')
                a('s_cbranch_scc0 %s' % Lt)
                self.site_note = note
                self.timeout()
                self.site_note = ''
                a('s_branch %s' % Ld)
                a.label(Lt)
            else:
                a('s_cbranch_scc1 %s' % (limit[1] if limit else Ld))
            for i in range(n):
                Ls = a.uniq('RS')
                a('s_mov_b64 exec, %s' % sp(ms + 2 * i))
                a('s_cbranch_execz %s' % Ls)
                load(i)
                a.label(Ls)
            a('s_branch %s' % Lc)
        self.tail.append(retry)
        return Ld

    def pretouch(self, vaddr, vt, lanes, soff='0'):
        a = self.a
        if not self.o.pret:
            return
        a('v_mov_b32 v%d, 0' % vt)
        a('s_mov_b64 exec, %s' % lanes)
        a('buffer_store_dword v%d, v%d, %s, %s offen' % (vt, vaddr, srd(SRD_WS), soff))
        a('buffer_load_dword v%d, v%d, %s, %s offen sc1 nt' % (vt, vaddr, srd(SRD_WS), soff))
        a('s_mov_b64 exec, -1')

    def zero_lds(self, va, vz):
        a = self.a
        a('v_lshlrev_b32 v%d, 2, v0' % va)
        a('v_mov_b32 v%d, 0' % vz)
        a('v_add_u32 v%d, 0x%x, v%d' % (va, MISC - 1024, va))
        a('ds_write_b32 v%d, v%d' % (va, vz))

    def fetch_nonce(self, t, vz):
        a, o = self.a, self.o
        LL, LG = a.uniq('NL'), a.uniq('NH')
        a('s_mov_b32 s%d, %d' % (S_SPIN, o.spin * 4))
        a('s_sleep %d' % o.ndel)
        a.label(LL)
        a('s_mov_b64 exec, 1')
        a('buffer_load_dwordx2 v[%d:%d], v%d, %s, 0 offen sc1' % (t + 1, t + 2, vz, srd(SRD_DBG)))
        a('s_mov_b64 exec, -1')
        a('s_waitcnt vmcnt(0)')
        a('v_readfirstlane_b32 s%d, v%d' % (S_NA, t + 1))
        a('v_readfirstlane_b32 s%d, v%d' % (S_NA + 1, t + 2))
        a('s_sub_u32 s%d, s%d, 1' % (S_SPIN, S_SPIN))
        a('s_cbranch_scc1 %s' % LG)
        a('s_cmp_eq_u32 s%d, 0' % (S_NA + 1))
        a('s_cbranch_scc1 %s' % LL)
        a('s_sub_u32 s7, s%d, 1500' % S_NG)
        a('s_lshl_b32 s7, s7, 5')
        a('s_sub_u32 s7, s%d, s7' % S_NA)
        a('s_cmp_ge_i32 s7, 0')
        a('s_cbranch_scc1 %s' % LG)
        a('s_cmp_gt_u32 s%d, %d' % (S_SPIN, o.spin * 4 - 40))
        a('s_cbranch_scc1 %s' % LL)
        a.label(LG)
        self.note(29, S_SPIN)
        a('v_mov_b32 v%d, 0x%x' % (t, NONA))
        a('v_mov_b32 v%d, s%d' % (t + 1, S_NA))
        a('v_mov_b32 v%d, s%d' % (t + 2, S_NA + 1))
        a('ds_write_b64 v%d, v[%d:%d]' % (t, t + 1, t + 2))
        self.lds_add(C_NA, t, t + 3, drain=False)

    def local(self, va, vd, lanes, rounds, sleep, issued=False):
        a = self.a
        L, L2, Ld = a.uniq('U'), a.uniq('UU'), a.uniq('UD')
        a('s_or_b32 s%d, s%d, s%d' % (S_NG + 1, S_NG + 1, S_XCC))
        a('s_add_u32 s%d, s%d, 0x10000' % (S_MK3, S_NG))
        a('s_addc_u32 s%d, s%d, 0' % (S_MK3 + 1, S_NG + 1))
        a('s_mov_b32 s%d, %d' % (S_UNI, rounds))
        a('s_mov_b64 exec, %s' % lanes)
        if issued:
            a('s_branch %s' % L2)
        a.label(L)
        a('buffer_load_dwordx2 v[%d:%d], v%d, %s, 0 offen sc1 nt' % (vd, vd + 1, va, srd(SRD_WS)))
        a.label(L2)
        a('s_waitcnt vmcnt(0)')
        a('v_cmp_gt_u64 %s, %s, v[%d:%d]' % (sp(S_MK4), sp(S_NG), vd, vd + 1))
        a('v_cmp_le_u64 vcc, %s, v[%d:%d]' % (sp(S_MK3), vd, vd + 1))
        a('s_or_b64 vcc, vcc, %s' % sp(S_MK4))
        a('s_cbranch_scc0 %s' % Ld)
        a('s_sleep %d' % sleep)
        a('s_sub_u32 s%d, s%d, 1' % (S_UNI, S_UNI))
        a('s_cmp_lg_u32 s%d, 0' % S_UNI)
        a('s_cbranch_scc1 %s' % L)
        a.label(Ld)
        a('s_mov_b64 exec, -1')

    def group_check(self, t):
        a = self.a
        a('s_lshl_b32 s7, s%d, 7' % S_H)
        a('s_add_u32 s7, s7, 0x%x' % WS_GF)
        a('v_lshl_add_u32 v%d, v1, 3, s7' % t)
        self.local(t, t + 2, '0x3f', self.o.kv, 8)
        a('s_min_u32 s7, s%d, 1' % S_UNI)
        a('s_add_u32 s7, s7, 16')
        self.lds_add(C_V, t, t + 1, val='s7', drain=False)

    def b_index(self, sd):
        a = self.a
        a('s_and_b32 s%d, s%d, 7' % (sd, S_H))
        a('s_lshl_b32 s%d, s%d, 3' % (sd, sd))
        a('s_lshr_b32 s7, s%d, 3' % S_H)
        a('s_lshl_b32 s7, s7, 1')
        a('s_add_u32 s%d, s%d, s7' % (sd, sd))
        a('s_add_u32 s%d, s%d, s%d' % (sd, sd, S_R))
        a('s_sub_u32 s%d, s%d, 6' % (sd, sd))

    def xlane_rows(self, op, regs, tmp):
        a = self.a
        for sw in ('v_permlane32_swap_b32', 'v_permlane16_swap_b32'):
            for i, r in enumerate(regs):
                a('v_mov_b32 v%d, v%d' % (tmp + i, r))
            for i, r in enumerate(regs):
                a('%s v%d, v%d' % (sw, r, tmp + i))
            for i, r in enumerate(regs):
                a('%s v%d, v%d, v%d' % (op, r, r, tmp + i))

    def ror(self, op, regs, shifts):
        for sh in shifts:
            for r in regs:
                self.a('%s_dpp v%d, v%d, v%d row_ror:%d row_mask:0xf bank_mask:0xf' % (op, r, r, r, sh))

    def entry(self):
        a = self.a
        a('s_cmp_ge_u32 s2, 256')
        a('s_cbranch_scc1 L_END')
        a('s_load_dwordx16 s[8:23], s[0:1], 0')
        a('s_load_dwordx8 s[24:31], s[0:1], 64')
        a('s_load_dwordx4 s[32:35], s[0:1], 96')
        a('s_memrealtime %s' % sp(S_NG))
        a('v_lshrrev_b32 v1, 6, v0')
        a('v_readfirstlane_b32 s%d, v1' % S_WAVE)
        a('v_and_b32 v1, 63, v0')
        a('v_lshrrev_b32 v2, 4, v1')
        a('v_and_b32 v3, 15, v1')
        if self.o.dev:
            a('v_mov_b32 v%d, 0' % V_TS)
        if self.o.probe:
            a('s_waitcnt lgkmcnt(0)')
            a('v_writelane_b32 v%d, s%d, 57' % (V_TS, S_NG))
        if self.o.xmap:
            a('s_lshr_b32 s%d, s2, 3' % S_H)
            a('s_and_b32 s%d, s2, 7' % S_R)
        else:
            a('s_and_b32 s%d, s2, 7' % S_H)
            a('s_lshr_b32 s7, s2, 6')
            a('s_lshl_b32 s7, s7, 3')
            a('s_or_b32 s%d, s%d, s7' % (S_H, S_H))
            a('s_bfe_u32 s%d, s2, 0x30003' % S_R)
            if self.o.spread:
                a('s_lshr_b32 s7, s2, 1')
                a('s_and_b32 s7, s7, s2')
                a('s_lshr_b32 s7, s7, 4')
                a('s_and_b32 s7, s7, 2')
                a('s_xor_b32 s%d, s%d, s7' % (S_R, S_R))
        a('s_getreg_b32 s%d, hwreg(HW_REG_XCC_ID, 0, 4)' % S_XCC)
        a('s_lshl_b32 s%d, s%d, 26' % (S_XCC, S_XCC))
        a('s_xor_b32 s%d, s%d, 4' % (S_CW, S_WAVE))
        a('s_cmp_eq_u32 s%d, 8' % S_WAVE)
        a('s_cselect_b32 s7, 8, 0')
        a('s_add_u32 s7, s7, s%d' % S_R)
        a('s_cmp_ge_u32 s7, 14')
        a('s_cbranch_scc1 L_LDB')
        a('s_cmp_ge_u32 s7, 12')
        a('s_cbranch_scc1 L_LDE')
        a('s_cmp_ge_u32 s7, 8')
        a('s_cbranch_scc1 L_LDA')
        a('s_mov_b32 s%d, 0' % S_SY)
        a('s_cmp_lt_u32 s%d, 4' % S_CW)
        a('s_cbranch_scc1 L_SIDE')
        a('s_cmp_ge_u32 s7, 4')
        a('s_cbranch_scc1 L_QABS')

    def voff_tr(self, d, par, lstride):
        a = self.a
        a('v_lshrrev_b32 v%d, 1, v3' % d)
        a('v_xor_b32 v%d, v%d, v2' % (d, d))
        if par:
            a('v_xor_b32 v%d, 4, v%d' % (d, d))
        a('v_lshlrev_b32 v%d, 5, v%d' % (d, d))
        a('v_lshl_add_u32 v%d, v2, %d, v%d' % (d, lstride, d))
        a('v_and_b32 v40, 1, v1')
        a('v_lshl_add_u32 v%d, v40, 4, v%d' % (d, d))

    def voff_row(self, d, lstride):
        a = self.a
        a('v_xor_b32 v%d, v3, v2' % d)
        a('v_lshlrev_b32 v%d, 4, v%d' % (d, d))
        a('v_lshl_add_u32 v%d, v2, %d, v%d' % (d, lstride, d))
        for q in range(1, 4):
            a('v_xor_b32 v%d, 0x%x, v%d' % (d + q, q << 6, d))

    def loader(self):
        a, o = self.a, self.o
        VT8, VR8, VK, VV, VLA, VFA, VF, VL, VC = 4, 6, 10, 14, 16, 17, 18, 19, 20
        sIss, sLand, sSlot, sNeed, sM0, sOff, sCnt, sWr = [S_T + i for i in range(8)]
        sB = [S_T + 8 + i for i in range(4)]
        sB0 = [S_T + 12 + i for i in range(4)]
        sN = S_T + 16

        def init1():
            if o.dev:
                a('s_mov_b32 s99, 0')
                a('s_mov_b32 s100, 0')
            if o.flow:
                a('v_mov_b32 v165, 0')
            a('s_mov_b32 s%d, 0' % sNeed)
            a('v_lshlrev_b32 v%d, 2, v1' % VLA)
            a('v_add_u32 v%d, 0x%x, v%d' % (VFA, FREE, VLA))
            a('v_add_u32 v%d, 0x%x, v%d' % (VLA, LAND, VLA))
            a('v_mov_b32 v%d, 0' % VF)

        def signal(k):
            if k:
                a('s_sub_u32 s7, s%d, %d' % (sIss, k & 0xffffffff))
            a('v_mov_b32 v%d, s%d' % (VL, 7 if k else sIss))
            a('ds_max_i32 v%d, v%d' % (VLA, VL))

        def ld_str(sr_, vof, stride):
            def ld(i):
                a('s_mov_b32 m0, s%d' % sM0)
                a('s_add_u32 s%d, s%d, 1024' % (sM0, sM0))
                a('buffer_load_dwordx4 v%d, %s, s%d offen nt lds' % (vof(i), srd(sr_), sOff))
                a('s_add_u32 s%d, s%d, %d' % (sOff, sOff, stride))
            return ld

        def check(D, lane):
            Lgo, Lst = a.uniq('GO'), a.uniq('ST')
            if o.ldonly:
                return
            a('s_waitcnt lgkmcnt(0)')
            a('v_readlane_b32 s%d, v%d, %s' % (S_X, VF, lane))
            a('s_cmp_lt_u32 s%d, s%d' % (S_X, sNeed))
            a('s_cbranch_scc1 %s' % Lst)
            a.label(Lgo)

            def stall():
                a.label(Lst)

                def recheck():
                    a('ds_read_b32 v%d, v%d' % (VF, VFA))
                    a('s_waitcnt lgkmcnt(0)')
                    a('v_readlane_b32 s%d, v%d, %s' % (S_X, VF, lane))
                    a('s_cmp_ge_u32 s%d, s%d' % (S_X, sNeed))
                    a('s_cbranch_scc1 %s' % Lgo)
                recheck()
                if o.dev:
                    a('s_add_u32 s99, s99, 1')
                    self.note(30, 99)
                    self.stampd(99, 1, 15)
                k = (D - 1) // 8 * 8
                while k >= 0:
                    a('s_waitcnt vmcnt(%d)' % k)
                    signal(k)
                    recheck()
                    k -= 8
                Ls = a.uniq('SP')
                a('s_mov_b32 s%d, %d' % (S_SPIN, o.spin * 8))
                a.label(Ls)
                if o.dev:
                    a('s_add_u32 s100, s100, 1')
                    self.note(31, 100)
                recheck()
                a('s_sub_u32 s%d, s%d, 1' % (S_SPIN, S_SPIN))
                a('s_cmp_lg_u32 s%d, 0' % S_SPIN)
                a('s_cbranch_scc1 %s' % Ls)
                a('s_branch %s' % Lgo)
            self.tail.append(stall)

        def body(D, n, ld, peek=True):
            for i in range(n):
                a('s_waitcnt vmcnt(%d)' % (D - 1))
                if (i - D + 1) % 8 == 0:
                    signal(D - 1 - i)
                ld(i)
                flow(i)
                if i == n - 3 and peek:
                    a('ds_read_b32 v%d, v%d' % (VF, VFA))
            a('s_add_u32 s%d, s%d, %d' % (sIss, sIss, n))

        def loop(cnt, fn):
            if cnt == 0:
                return
            L = a.uniq('LL')
            a('s_mov_b32 s%d, %d' % (sCnt, cnt))
            a.label(L)
            fn()
            a('s_sub_u32 s%d, s%d, 1' % (sCnt, sCnt))
            a('s_cmp_lg_u32 s%d, 0' % sCnt)
            a('s_cbranch_scc1 %s' % L)

        def ld_rows(sr_, vof):
            def ld(i):
                if i & 3 == 0:
                    a('s_add_u32 s7, s%d, %d' % (sM0, i * 1024))
                    a('s_mov_b32 m0, s7')
                    a('s_add_u32 s%d, s%d, %d' % (sOff, sB[0], i * 1024))
                a('buffer_load_dwordx4 v%d, %s, s%d offen offset:%d nt lds' % (vof(i), srd(sr_), sOff, (i & 3) * 1024))
            return ld

        sNow, sDue, sPer, sTk, sTv, sNr = S_MK, S_T + 17, sLand, S_MK2, S_MK3, sN
        VH = 24

        def flow(i):
            if o.flow and i % 8 == 2:
                a('s_memrealtime %s' % sp(S_TS))
            if o.flow and i % 8 == 4:
                a('s_waitcnt lgkmcnt(0)')
                a('s_add_u32 s98, s%d, %d' % (sIss, i))
                a('s_lshr_b32 s98, s98, 3')
                a('v_mov_b32 v164, s%d' % S_TS)
                a('v_cmp_eq_u32 vcc, s98, v1')
                a('v_cndmask_b32 v165, v165, v164, vcc')

        def half(D, hh, sr_, vo, vh, nv):
            assert D % 2 == 0
            for i in range(16):
                w = 2 * hh + (i >> 3)
                if i & 3 == 0:
                    a('s_add_u32 m0, s%d, %d' % (sM0, w * 8192 + (i & 4) * 1024))
                if i & 1 == 0:
                    a('s_waitcnt vmcnt(%d)' % (D - 2))
                    if (i - D + 2) % 8 == 0:
                        signal(D - 2 - i)
                a('buffer_load_dwordx4 v%d, %s, s%d offen offset:%d nt lds' % (
                    (vh if i & 4 else vo) + i % nv, srd(sr_), sB[w], (i & 3) * 1024))
                flow(i)
                if i == 12:
                    a('s_memrealtime %s' % sp(sNow))
                    if hh:
                        a('ds_read_b32 v%d, v%d' % (VF, VFA))
                if i & 7 == 7:
                    a('s_add_u32 s%d, s%d, 8192' % (sB[w], sB[w]))

        def adv():
            a('s_add_u32 s%d, s%d, 1' % (sSlot, sSlot))
            a('s_and_b32 s%d, s%d, 3' % (sSlot, sSlot))
            a('s_lshl_b32 s%d, s%d, 15' % (sM0, sSlot))
            a('s_cmp_eq_u32 s%d, 2' % sSlot)
            a('s_cselect_b32 s7, 4, 0')
            a('s_add_u32 s%d, s%d, s7' % (sNeed, sNeed))

        def rounds(ws, sr_, vo, vh, nv):
            ws = [ws // 10000, ws // 100 % 100, ws % 100]
            L = a.uniq('RD')
            a.label(L)
            a('s_and_b32 s%d, s%d, 0xff' % (sPer, sTk))
            a('s_lshl_b32 s%d, s%d, 6' % (sPer, sPer))
            a('s_lshr_b64 %s, %s, 8' % (sp(sTk), sp(sTk)))
            check(ws[2], 's%d' % sSlot)
            for hh in range(2):
                Ls, Lb, Lj = a.uniq('WS'), a.uniq('WB'), a.uniq('WJ')
                if hh or o.ldonly:
                    a('s_waitcnt lgkmcnt(0)')
                a('s_lshl_b32 s7, s%d, 5' % sNow)
                a('s_sub_u32 s7, s7, s%d' % sDue)
                a('s_add_u32 s%d, s%d, s%d' % (sDue, sDue, sPer))
                a('s_cmp_lt_i32 s7, %d' % (-32 * o.llo))
                a('s_cbranch_scc1 %s' % Ls)
                a('s_cmp_gt_i32 s7, s%d' % S_SY)
                a('s_cbranch_scc1 %s' % Lb)
                half(ws[1], hh, sr_, vo, vh, nv)
                a('s_branch %s' % Lj)
                a.label(Ls)
                half(ws[0], hh, sr_, vo, vh, nv)
                a('s_branch %s' % Lj)
                a.label(Lb)
                half(ws[2], hh, sr_, vo, vh, nv)
                a.label(Lj)
                a('s_add_u32 s%d, s%d, 16' % (sIss, sIss))
            adv()
            a('s_sub_u32 s%d, s%d, 1' % (sCnt, sCnt))
            a('s_cmp_lg_u32 s%d, 0' % sCnt)
            a('s_cbranch_scc1 %s' % L)

        def drain(D, extra=0):
            k = (D - 1) // 8 * 8
            while k >= 0:
                a('s_waitcnt vmcnt(%d)' % (k + extra))
                signal(k)
                k -= 8

        def head(ld, n, early=False):
            if not early:
                a('s_barrier')
            self.stamp(0)
            for i in range(n):
                ld(i)
            if early:
                a('s_barrier')
            init1()
            a('s_mov_b32 s%d, %d' % (sIss, n))
            self.mk_srd(SRD_WS, P_WS, WS_SIZE)

        def kv_setup():
            self.load_tab()
            self.voff_row(VK, 8)
            self.voff_tr(VV, 0, 8)
            a('v_xor_b32 v%d, 0x80, v%d' % (VV + 1, VV))
            for k in range(6):
                a('v_add_u32 v%d, 4096, v%d' % (VH + k, VK + k))
            for w in range(4):
                a('s_mov_b32 s%d, %d' % (sN, w))
                self.wave_tab(sN, sB[w], sB0[w], None)
                a('s_lshl_b32 s%d, s%d, 5' % (sB[w], sB[w]))
                a('s_add_u32 s%d, s%d, s%d' % (sB[w], sB[w], S_H))
                a('s_lshl_b32 s%d, s%d, 20' % (sB[w], sB[w]))
                a('s_lshl_b32 s%d, s%d, 13' % (sB0[w], sB0[w]))
                a('s_add_u32 s%d, s%d, s%d' % (sB0[w], sB0[w], sB[w]))
                a('s_add_u32 s%d, s%d, 0xC0000' % (sB0[w], sB0[w]))
                a('s_mov_b32 s%d, s%d' % (sB[w], sB0[w]))

        def touch(lst):
            a('s_mov_b64 exec, 1')
            for sr_, so in lst:
                a('buffer_load_dword v100, v%d, %s, %s offen nt' % (VK, srd(sr_), so))
            a('s_mov_b64 exec, -1')

        kvt = [(sr_, 's%d' % sB[w]) for sr_ in (SRD_A, SRD_B) for w in range(4)]

        def per(x, n):
            x = str(x)
            x = [int(x[i:i + 2]) for i in range(0, len(x), 2)]
            if len(x) == 1:
                x = x * n
            assert len(x) == n
            return x

        def sched(t0, pk, pv, nk, n):
            self.get_nonce('a', 40)
            if o.ldonly:
                a('s_lshl_b32 s%d, s%d, 5' % (S_NA, S_NG))
            a('s_add_u32 s%d, s%d, %d' % (sDue, S_NA, 32 * t0))
            for sr_, lst in ((sTk, pk), (sTv, pv)):
                v = sum(x << (8 * i) for i, x in enumerate(lst))
                a('s_mov_b32 s%d, 0x%x' % (sr_, v & 0xffffffff))
                a('s_mov_b32 s%d, 0x%x' % (sr_ + 1, v >> 32))
            a('s_mov_b32 s%d, %d' % (S_SY, 32 * o.lhi))
            a('s_mov_b32 s%d, %d' % (sCnt, nk))
            a('s_mov_b32 s%d, %d' % (sNr, n))
            a('s_memrealtime %s' % sp(sNow))

        a.label('L_LDA')
        a('s_setprio 3')
        a('v_lshrrev_b32 v%d, 1, v3' % VC)
        a('v_and_b32 v40, 1, v2')
        a('v_xor_b32 v%d, v%d, v40' % (VC, VC))
        a('v_lshlrev_b32 v%d, 5, v%d' % (VC, VC))
        a('v_lshl_add_u32 v%d, v2, 10, v%d' % (VC, VC))
        a('v_and_b32 v40, 1, v1')
        a('v_lshl_add_u32 v%d, v40, 4, v%d' % (VC, VC))
        for j in range(1, 4):
            a('v_xor_b32 v%d, 0x%x, v%d' % (VC + j, j << 6, VC))
        a('s_lshl_b32 s%d, s%d, 17' % (sOff, S_H))
        a('s_lshl_b32 s7, s%d, 8' % S_R)
        a('s_add_u32 s%d, s%d, s7' % (sOff, sOff))
        a('s_mov_b32 s%d, s%d' % (sWr, sOff))
        a('s_mov_b32 s%d, 0' % sM0)
        kv_setup()
        a('s_waitcnt lgkmcnt(0)')
        self.mk_srd(SRD_D, P_WO, 4194304)
        self.mk_srd(SRD_A, P_K, 134217728)
        self.mk_srd(SRD_B, P_V, 134217728)
        head(None, 0)
        if o.tch & 1:
            self.mk_srd(SRD_C, P_OUT, 8192)
            a('s_lshl_b32 s7, s%d, 8' % S_H)
            touch(kvt + [(SRD_D, 's%d' % sWr), (SRD_C, 's7')])
        if o.tch & 8:
            a('s_lshl_b32 s7, s2, 14')
            for p in (P_WUV, P_BWO):
                self.mk_srd(SRD_C, p, 4194304)
                touch([(SRD_C, 's7')])
        a('s_mov_b32 s%d, 0' % sSlot)
        for hh in range(2):
            if hh == o.ah:
                if not o.ldonly:
                    self.lds_wait(C_MX, o.aw, 40, 41, sleep=0)
                self.stamp(1)
            half(o.d1, hh, SRD_A, VK, VH, 4)
            a('s_add_u32 s%d, s%d, 16' % (sIss, sIss))
        adv()
        pk = per(o.pak, self.na[0])
        sched(o.ta0 + 4 * pk[0], pk[1:], per(o.pav, self.na[0]), self.na[0] - 1, self.na[0])
        a.label('L_KV')
        rounds(o.wk, SRD_A, VK, VH, 4)
        self.stamp(2)
        for w in range(4):
            a('s_mov_b32 s%d, s%d' % (sB[w], sB0[w]))
        a('s_mov_b32 s%d, s%d' % (sCnt, sNr))
        a('s_mov_b64 %s, %s' % (sp(sTk), sp(sTv)))
        a('s_cmp_ge_u32 s%d, 4' % S_R)
        a('s_cselect_b32 s%d, %d, s%d' % (S_SY, 32 * o.lhe, S_SY))
        rounds(o.wv, SRD_B, VV, VH + 4, 2)
        self.stamp(3)
        LE = a.uniq('KE')
        a('s_cmp_ge_u32 s%d, 4' % S_R)
        a('s_cbranch_scc1 %s' % LE)
        a('s_mov_b32 s%d, s%d' % (sOff, sWr))
        check(o.dl, 's%d' % sSlot)
        loop(2, lambda: body(o.dl, 16, ld_str(SRD_D, lambda i: VC + (i >> 2), 4096), peek=False))
        a.label(LE)
        drain(max(o.dl, o.wv % 100))
        self.stamp(4)
        self.end()

        a.label('L_LDE')

        a('s_setprio 3')
        self.voff_row(VR8, 13)
        a('s_lshl_b32 s%d, s%d, 21' % (sOff, S_R))
        a('s_lshl_b32 s7, s%d, 8' % S_H)
        a('s_add_u32 s%d, s%d, s7' % (sOff, sOff))
        a('s_sub_u32 s%d, s%d, 0x800000' % (sOff, sOff))
        a('s_mov_b32 s%d, 0x%x' % (sM0, L_UK))
        a('s_waitcnt lgkmcnt(0)')
        self.mk_srd(SRD_C, P_WUK, 4194304)
        ld_uk = ld_str(SRD_C, lambda i: VR8 + (i & 3), 32768)
        head(ld_uk, o.eh, True)
        self.mk_srd(SRD_D, P_WUV, 4194304)
        self.mk_srd(SRD_A, P_K, 134217728)
        self.mk_srd(SRD_B, P_V, 134217728)
        self.voff_tr(VC, 0, 13)
        a('v_xor_b32 v%d, 0x80, v%d' % (VC + 1, VC))
        for j in range(2, 4):
            a('v_mov_b32 v%d, 0' % (VC + j))
        a('s_mov_b32 s%d, 0' % sWr)
        kv_setup()
        if o.tch & 2:
            a('s_mov_b32 s7, 0x200000')
            touch([(SRD_D, '0'), (SRD_D, 's7')] + kvt)
        loop((64 - o.eh) // 8, lambda: body(o.duk, 8, ld_uk, peek=False))
        if o.hq and not o.ldonly:
            drain(o.duk)
            self.lds_wait(C_QB, o.hq, 40, 41, sleep=0)
        self.stamp(1)
        a('s_lshl_b32 s%d, s%d, 8' % (sOff, S_H))
        a('s_lshl_b32 s7, s%d, 21' % S_R)
        a('s_add_u32 s%d, s%d, s7' % (sOff, sOff))
        a('s_sub_u32 s%d, s%d, 0x800000' % (sOff, sOff))
        a('s_mov_b32 s%d, 0' % sM0)
        loop(8, lambda: body(o.de1, 8, ld_str(SRD_D, lambda i: VC + (i & 1), 32768)))
        a('s_mov_b32 s%d, 2' % sSlot)
        a('s_mov_b32 s%d, 4' % sNeed)
        sched(o.te0, per(o.pek, self.ne[0]), per(o.pev, self.ne[0]), self.ne[0], self.ne[0])
        a('s_branch L_KV')

        a.label('L_LDB')
        sBi = sB[1]
        a('s_setprio 3')
        a('v_lshlrev_b32 v%d, 4, v1' % VC)
        for i in range(1, 16):
            f = ((i & 3) << 2) | (i >> 2)
            a('v_xor_b32 v%d, 0x%x, v%d' % (VC + i, f << 4, VC))
        self.b_index(sBi)
        tstr = 131072 if o.til else 16384
        if o.til:
            a('s_lshr_b32 s%d, s%d, 3' % (sB[0], sBi))
            a('s_lshl_b32 s%d, s%d, 21' % (sB[0], sB[0]))
            a('s_and_b32 s7, s%d, 7' % sBi)
            a('s_lshl_b32 s7, s7, 14')
            a('s_add_u32 s%d, s%d, s7' % (sB[0], sB[0]))
        else:
            a('s_lshl_b32 s%d, s%d, 18' % (sB[0], sBi))
        a('s_mov_b32 s%d, 0' % sM0)
        a('s_waitcnt lgkmcnt(0)')
        self.mk_srd(SRD_A, P_CKV, 16777216)
        def ld0(i):
            ld_rows(SRD_A, lambda i: VC + i)(i & 15)
            if i & 15 == 15:
                a('s_add_u32 s%d, s%d, %d' % (sB[0], sB[0], tstr))
                a('s_add_u32 s%d, s%d, 16384' % (sM0, sM0))
        head(ld0, 16 * o.bh, True)
        self.mk_srd(SRD_B, P_BWO, 4194304)
        self.voff_tr(VK, 0, 10)
        a('v_xor_b32 v%d, 0x80, v%d' % (VK + 1, VK))
        if o.tch & 4:
            a('s_mov_b32 s7, 0x200000')
            touch([(SRD_B, '0'), (SRD_B, 's7')])
        nf = min(o.n0, 7)
        tab = [1 if T < o.n0 else 1 | 8 for T in range(nf, 11)] + [1 | 4] * 2 + [2] * 3
        tv = sum(x << (4 * i) for i, x in enumerate(tab))
        a('s_mov_b32 s%d, 0x%x' % (sB0[0], tv & 0xffffffff))
        a('s_mov_b32 s%d, 0x%x' % (sB0[1], tv >> 32))
        a('s_mov_b32 s%d, 0x%x' % (sB0[2], (TSLOTS >> (4 * nf)) & 0xffffffff))
        a('s_mov_b32 s%d, 0x%x' % (sB0[3], TSLOTS >> (4 * nf + 32)))
        self.stamp(1)

        def tile(D, chk):
            def fn():
                if chk:
                    a('s_and_b32 s%d, s%d, 3' % (sNeed, sB0[0]))
                    a('s_lshl_b32 s%d, s%d, 3' % (sNeed, sNeed))
                    a('s_bfe_u32 s%d, s%d, 0x20002' % (sSlot, sB0[0]))
                    a('s_lshr_b64 %s, %s, 4' % (sp(sB0[0]), sp(sB0[0])))
                    a('s_and_b32 s%d, s%d, 15' % (sM0, sB0[2]))
                    a('s_lshl_b32 s%d, s%d, 14' % (sM0, sM0))
                    a('s_lshr_b64 %s, %s, 4' % (sp(sB0[2]), sp(sB0[2])))
                    check(D, 's%d' % sSlot)
                body(D, 16, ld_rows(SRD_A, lambda i: VC + i), peek=chk)
                a('s_add_u32 s%d, s%d, %d' % (sB[0], sB[0], tstr))
                if not chk:
                    a('s_add_u32 s%d, s%d, 16384' % (sM0, sM0))
            return fn
        loop(nf - o.bh, tile(o.db0, False))
        self.stamp(2)
        loop(o.n0 - nf, tile(o.db1, True))
        loop(16 - o.n0, tile(o.db, True))
        self.stamp(3)
        a('s_lshr_b32 s%d, s%d, 3' % (sOff, sBi))
        a('s_lshl_b32 s%d, s%d, 17' % (sOff, sOff))
        a('s_and_b32 s7, s%d, 3' % sBi)
        a('s_lshl_b32 s7, s7, 8')
        a('s_add_u32 s%d, s%d, s7' % (sOff, sOff))
        a('s_and_b32 s7, s%d, 4' % sBi)
        a('s_lshl_b32 s7, s7, 19')
        a('s_add_u32 s%d, s%d, s7' % (sOff, sOff))
        a('s_mov_b32 s%d, 0' % sM0)
        a('s_mov_b32 s%d, 24' % sNeed)
        check(o.db, '0')

        def wo_head():
            body(o.db, 16, ld_str(SRD_B, lambda i: VK + (i & 1), 4096), peek=False)
            a('s_bitcmp0_b32 s%d, 14' % sM0)
            a('s_cselect_b32 s7, %d, 0' % (7 * 131072))
            a('s_add_u32 s%d, s%d, s7' % (sOff, sOff))
        if o.wo1:
            assert o.db + 16 <= 63
            for i in range(16):
                ld_str(SRD_B, lambda i: VK + (i & 1), 4096)(i)
            drain(o.db, 16)
            a('s_add_u32 s%d, s%d, 16' % (sIss, sIss))
            loop(o.wo1 - 1, wo_head)
        drain(o.db)
        self.stamp(4)
        if not o.ldonly and o.wo1 < 4:
            self.lds_wait(C_L2, o.wl2, 48, 49, sleep=1)
        self.stamp(7)

        loop(4 - o.wo1, wo_head)
        drain(o.db)
        self.stamp(8)
        if True:
            self.end()
            a.label('L_RED')
            a('s_and_b32 s7, s%d, 7' % S_H)
            a('s_cbranch_scc1 %s' % ('L_FIN' if o.dev else 'L_END'))
            a('s_add_u32 s%d, s%d, s%d' % (S_T + 1, S_H, S_R))
            a('s_and_b32 s7, s%d, 3' % S_CW)
            a('s_cmp_eq_u32 s7, 3')
            a('s_cbranch_scc1 %s' % ('L_FIN' if o.dev else 'L_END'))
            a('s_cmp_eq_u32 s7, 2')
            a('s_cbranch_scc1 L_REDB')
            a('s_lshl_b32 s%d, s%d, 1' % (S_T, S_T + 1))
            a('s_add_u32 s%d, s%d, s7' % (S_T, S_T))
            self.reducer(False)
            a.label('L_REDB')
            self.reducer(True)

    def reducer(self, isb):
        a, o = self.a, self.o
        Y, T, AC = 48, 36, 44
        if o.ldonly:
            self.end()
            return
        sU, sO2, sK, MS = S_T, S_T + 1, S_MK, S_T + 2
        n = 4
        self.mk_srd(SRD_C, P_OUT, 8192)
        a('s_mov_b32 s%d, 0x3f80' % sK)
        a('s_mov_b32 s%d, 0x3f800000' % (sK + 1))
        if isb:
            sTl = sO2
            a('s_lshl_b32 s7, s%d, 12' % sTl)
            a('s_add_u32 s7, s7, 0x%x' % WS_YB)
            a('v_lshl_add_u32 v%d, v1, 4, s7' % T)
            a('s_lshl_b32 s7, s%d, 5' % sTl)
            a('s_add_u32 s7, s7, 1024')
            a('v_and_b32 v%d, 3, v1' % (T + 2))
            a('v_lshl_add_u32 v%d, v%d, 3, s7' % (T + 1, T + 2))
            a('v_lshrrev_b32 v%d, 2, v3' % (T + 2))
            a('v_lshl_add_u32 v%d, v%d, 11, v%d' % (T + 1, T + 2, T + 1))
        else:
            a('s_lshl_b32 s7, s%d, 12' % sU)
            a('s_add_u32 s7, s7, 0x%x' % WS_YA)
            a('v_lshl_add_u32 v%d, v1, 4, s7' % T)
            a('s_lshr_b32 s7, s%d, 4' % sU)
            a('s_lshl_b32 s7, s7, 11')
            a('s_and_b32 s%d, s%d, 15' % (sO2, sU))
            a('s_lshl_b32 s%d, s%d, 6' % (sO2, sO2))
            a('s_add_u32 s7, s7, s%d' % sO2)
            a('v_lshl_add_u32 v%d, v1, 3, s7' % (T + 1))
        self.mpoll(n, lambda i: a('buffer_load_dwordx4 %s, v%d, %s, 0 offen offset:%d sc1' % (
            vr(Y + 4 * i, 4), T, srd(SRD_WS), i * 1024)), lambda i: Y + 4 * i + 2, MS, 0)
        self.stamp(28 + isb)
        for i in range(n):
            for k in range(4):
                a('v_dot2_f32_bf16 v%d, v%d, s%d, %s' % (
                    AC + k, Y + 4 * i + (k >> 1), sK + (k & 1), '0' if i == 0 else 'v%d' % (AC + k)))
        if not isb:
            self.ror('v_add_f32', range(AC, AC + 4), [8])
        a('v_permlane32_swap_b32 v%d, v%d' % (AC, AC + 2))
        a('v_permlane32_swap_b32 v%d, v%d' % (AC + 1, AC + 3))
        a('v_add_f32 v%d, v%d, v%d' % (AC, AC, AC + 2))
        a('v_add_f32 v%d, v%d, v%d' % (AC + 1, AC + 1, AC + 3))
        a('v_mov_b32 v%d, v%d' % (AC + 2, AC))
        a('v_mov_b32 v%d, v%d' % (AC + 3, AC + 1))
        a('v_permlane16_swap_b32 v%d, v%d' % (AC, AC + 2))
        a('v_permlane16_swap_b32 v%d, v%d' % (AC + 1, AC + 3))
        a('v_add_f32 v%d, v%d, v%d' % (AC, AC, AC + 2))
        a('v_add_f32 v%d, v%d, v%d' % (AC + 1, AC + 1, AC + 3))
        a('v_cvt_pk_bf16_f32 v%d, v%d, v%d' % (AC, AC, AC + 1))
        a('v_mov_b32 v%d, v%d' % (AC + 1, AC))
        a('v_permlane32_swap_b32 v%d, v%d' % (AC, AC + 1))
        a('s_mov_b64 exec, %s' % ('0xffff' if isb else '0xff'))
        a('buffer_store_dwordx2 %s, v%d, %s, 0 offen' % (vr(AC, 2), T + 1, srd(SRD_C)))
        a('s_mov_b64 exec, -1')
        self.stamp(30 + isb)
        self.end()

    def end_red(self):
        self.a('s_branch L_RED')

    def q_gather(self, slot0, sB, sBb, bad, limit=None, sleep=0):
        a = self.a
        G, D = 48, 24
        sK = S_T + 10
        a('s_lshl_b32 s7, s%d, 15' % S_H)
        a('s_lshl_b32 s%d, s%d, 9' % (sBb, sB))
        a('s_add_u32 s7, s7, s%d' % sBb)
        a('s_add_u32 s7, s7, 0x%x' % (WS_QP + slot0 * 2048))
        a('v_and_b32 v20, 31, v1')
        a('v_lshl_add_u32 v7, v20, 4, s7')
        a('v_lshrrev_b32 v21, 5, v1')
        a('v_lshl_add_u32 v7, v21, 11, v7')
        a('v_add_u32 v22, 4096, v7')
        a('s_mul_i32 s7, s%d, 320' % sB)
        a('s_add_u32 s%d, s7, 0x%x' % (sBb, QBUF + (4 * 320 if slot0 else 0)))
        a('v_lshl_add_u32 v6, v20, 3, s%d' % sBb)
        a('v_lshl_add_u32 v6, v21, 2, v6')
        a('s_mov_b32 s%d, 0x3f80' % sK)
        a('s_mov_b32 s%d, 0x3f800000' % (sK + 1))

        def ld1(i):
            a('buffer_load_dwordx4 %s, v%d, %s, 0 offen sc1 nt' % (vr(G + 4 * i, 4), (7, 22)[i], srd(SRD_WS)))

        def run():
            LY = self.mpoll(2, ld1, lambda i: G + 4 * i + 2, 44, sleep, limit=limit, bad=bad)
            self.stamp(4)
            self.note(15, S_SPIN)
            for i in range(2):
                for k in range(4):
                    a('v_dot2_f32_bf16 v%d, v%d, s%d, %s' % (
                        D + k, G + 4 * i + (k >> 1), sK + (k & 1), '0' if i == 0 else 'v%d' % (D + k)))
            a('v_permlane32_swap_b32 v%d, v%d' % (D, D + 2))
            a('v_permlane32_swap_b32 v%d, v%d' % (D + 1, D + 3))
            a('v_add_f32 v%d, v%d, v%d' % (D, D, D + 2))
            a('v_add_f32 v%d, v%d, v%d' % (D + 1, D + 1, D + 3))
            a('v_cvt_pk_bf16_f32 v%d, v%d, v%d' % (D, D, D + 1))
            a('ds_write_b32 v6, v%d' % D)
            return LY
        return ld1, run

    def prologue(self):
        a, o = self.a, self.o
        sC4, sOff, sBb, sSt, sW = [S_T + 1 + i for i in range(5)]
        X, FR, D, PS = 128, 32, 24, 64
        VT, VQP = 8, 4
        a('s_and_b32 s%d, s%d, 3' % (sC4, S_CW))
        self.voff_tr(VT + 2, 0, 13)
        a('v_xor_b32 v%d, 0x80, v%d' % (VT + 3, VT + 2))
        a('s_lshl_b32 s%d, s%d, 20' % (sW, S_R))
        a('s_lshl_b32 s7, s%d, 8' % S_H)
        a('s_add_u32 s%d, s%d, s7' % (sW, sW))
        a('s_lshl_b32 s7, s%d, 18' % sC4)
        a('s_add_u32 s%d, s%d, s7' % (sW, sW))
        a('s_lshl_b32 s%d, s%d, 13' % (sSt, sC4))
        a('s_add_u32 s%d, s%d, 0x%x' % (sSt, sSt, L_WQ))
        a('v_and_b32 v%d, 3, v1' % VT)
        a('v_lshlrev_b32 v%d, 10, v%d' % (VT + 1, VT))
        a('v_lshl_add_u32 v%d, v2, 4, v%d' % (VT + 1, VT + 1))
        a('s_lshl_b32 s%d, s%d, 8' % (sOff, S_R))
        a('s_waitcnt lgkmcnt(0)')

        def wl(sr_, i0, i1):
            for i in range(i0, i1):
                a('s_mov_b32 m0, s%d' % sSt)
                a('s_add_u32 s%d, s%d, 1024' % (sSt, sSt))
                a('buffer_load_dwordx4 v%d, %s, s%d offen nt lds' % (VT + 2 + (i & 1), srd(sr_), sBb))
                a('s_add_u32 s%d, s%d, %d' % (sBb, sBb, 32768))

        def xl(m, px):
            self.mk_srd(SRD_A, px, 4096)
            for ks in range(4):
                a('buffer_load_dwordx4 %s, v%d, %s, s%d offen offset:%d' % (
                    vr(X + 16 * m + 4 * ks, 4), VT + 1, srd(SRD_A), sOff, ks * 64))
        self.mk_srd(SRD_B, P_BWQ, 4194304)
        a('s_mov_b32 s%d, s%d' % (sBb, sW))
        wl(SRD_B, 0, 8)
        xl(0, P_BX)
        self.stamp(0)
        a('s_barrier')
        self.mk_srd(SRD_WS, P_WS, WS_SIZE)
        a('s_lshl_b32 s7, s%d, 4' % S_H)
        a('s_add_u32 s7, s7, s%d' % S_R)
        a('s_lshl_b32 s7, s7, 4')
        a('s_add_u32 s7, s7, s%d' % sC4)
        a('s_lshl_b32 s7, s7, 7')
        a('s_add_u32 s7, s7, 0x%x' % WS_QP)
        a('v_lshl_add_u32 v%d, v%d, 9, s7' % (VQP, VT))
        a('v_lshl_add_u32 v%d, v2, 4, v%d' % (VQP, VQP))
        a('v_and_b32 v%d, 4, v1' % (VT + 4))
        a('v_lshl_add_u32 v%d, v%d, 4, v%d' % (VQP, VT + 4, VQP))
        a('v_add_u32 v%d, 16384, v%d' % (VQP + 1, VQP))
        if o.qpre:
            self.pretouch(VQP + 1, 16, '15')
        a('s_sub_u32 s%d, s%d, %d' % (sSt, sSt, L_WQ - L_UK + 8192))
        self.mk_srd(SRD_B, P_WQ, 4194304)
        a('s_mov_b32 s%d, s%d' % (sBb, sW))
        xl(1, P_AX)
        wl(SRD_B, 0, o.wqe)
        if o.yst & 4:
            a('s_lshl2_add_u32 s7, s%d, s%d' % (S_R, sC4))
            a('s_lshl_b32 s7, s7, 5')
            a('s_add_u32 s7, s7, s%d' % S_H)
            a('s_lshl_b32 s7, s7, 7')
            a('s_add_u32 s7, s7, 0x%x' % WS_YA)
            a('v_and_b32 v17, 7, v1')
            a('v_lshl_add_u32 v17, v17, 4, s7')
            a('v_lshrrev_b32 v18, 3, v1')
            a('v_lshl_add_u32 v17, v18, 16, v17')
            a('s_mov_b64 exec, 0xffffffff')
            a('buffer_store_dwordx4 v[0:3], v17, %s, 0 offen sc1' % srd(SRD_WS))
            a('s_mov_b64 exec, -1')
        if o.ldonly:
            wl(SRD_B, o.wqe, 8)
            a('s_endpgm')
        a('v_cmp_gt_u32 %s, 8, v3' % sp(S_MK))
        TA = 20
        a('v_bfe_u32 v%d, v1, 2, 2' % (TA + 1))
        a('v_lshl_add_u32 v%d, v2, 3, v%d' % (TA, TA + 1))
        a('s_lshl_b32 s7, s%d, 1' % sC4)
        a('v_xor_b32 v%d, s7, v%d' % (TA + 1, TA + 1))
        a('v_lshlrev_b32 v%d, 8, v%d' % (TA, TA))
        a('v_lshl_add_u32 v%d, v%d, 5, v%d' % (TA, TA + 1, TA))
        a('v_lshl_add_u32 v%d, v%d, 3, v%d' % (TA, VT, TA))
        a('v_add_u32 v%d, 0x%x, v%d' % (TA, L_UK, TA))
        a('v_xor_b32 v%d, 32, v%d' % (TA + 1, TA))
        a('v_xor_b32 v%d, 0x480, v%d' % (TA + 2, TA))
        a('v_xor_b32 v%d, 0x4a0, v%d' % (TA + 3, TA))

        def partial(m, cnt):
            self.lds_add(C_MX, VT + 6, VT + 7, drain=False)
            self.lds_wait(C_MX, cnt, VT + 6, VT + 7, sleep=0)
            self.stamp(2 + 4 * m)
            of = 0 if m else L_WQ - L_UK
            for ks in range(4):
                for t in range(2):
                    f = FR + 8 * ks + 4 * t
                    a('ds_read_b64_tr_b16 v[%d:%d], v%d offset:%d' % (f, f + 1, TA + t, of + ks * 8192))
                    a('ds_read_b64_tr_b16 v[%d:%d], v%d offset:%d' % (f + 2, f + 3, TA + 2 + t, of + ks * 8192))
                if ks == 2:
                    a('s_waitcnt lgkmcnt(8)')
            for ks in range(4):
                a('s_waitcnt lgkmcnt(%d)' % (12 - 4 * ks))
                for t in range(2):
                    a('v_mfma_f32_16x16x32_bf16 %s, %s, %s, %s' % (
                        vr(D + 4 * t, 4), vr(FR + 8 * ks + 4 * t, 4), vr(X + 16 * m + 4 * ks, 4),
                        '0' if ks == 0 else vr(D + 4 * t, 4)))
            if m == 0:
                a('s_memrealtime %s' % sp(S_MK3))
            self.lds_add(FREE + (2 if m else 3) * 4, VT + 6, VT + 7, drain=False)
            p = PS + 8 * m
            for t in range(2):
                a('v_cvt_pk_bf16_f32 v%d, v%d, v%d' % (p + 4 * t, D + 4 * t, D + 4 * t + 1))
                a('v_cvt_pk_bf16_f32 v%d, v%d, v%d' % (p + 4 * t + 1, D + 4 * t + 2, D + 4 * t + 3))
            for k in range(2):
                a('v_mov_b32_dpp v%d, v%d %s row_mask:0xf bank_mask:0x2' % (p + k, p + 4 + k, DPP_ID))
        a('s_waitcnt vmcnt(%d)' % ((2 if o.qpre else 0) + 4 + o.wqe + (1 if o.yst & 4 else 0)))
        partial(0, 4)
        qst = ['buffer_store_dwordx4 %s, v%d, %s, 0 offen' % (vr(PS + 8 * m, 4), VQP + 1 - m, srd(SRD_WS)) for m in range(2)]
        a('s_waitcnt lgkmcnt(0)')
        a('s_or_b32 s%d, s%d, s%d' % (S_MK3 + 1, S_MK3 + 1, S_XCC))
        a('v_mov_b32 v%d, s%d' % (PS + 2, S_MK3))
        a('v_mov_b32 v%d, s%d' % (PS + 3, S_MK3 + 1))
        a('s_mov_b64 exec, %s' % sp(S_MK))
        a(qst[0])
        a('s_mov_b64 exec, -1')
        self.stamp(3)
        wl(SRD_B, o.wqe, 8)
        self.lds_add(C_MX, VT + 6, VT + 7, drain=False)
        a('s_waitcnt vmcnt(0)')
        partial(1, 12)
        a('v_mov_b32 v%d, v%d' % (PS + 10, PS + 2))
        a('v_mov_b32 v%d, v%d' % (PS + 11, PS + 3))
        a('s_mov_b64 exec, %s' % sp(S_MK))
        a(qst[1])
        a('s_mov_b64 exec, -1')
        self.lds_add(C_MX, VT + 6, VT + 7, drain=False)
        self.group_check(VT + 2)
        self.get_nonce('a', VT + 4)
        self.lds_wait(LAND, 96, VT + 6, VT + 7, sleep=16)
        for m in range(2):
            a('v_mov_b32 v%d, s%d' % (PS + 8 * m + 2, S_NA))
            a('v_mov_b32 v%d, s%d' % (PS + 8 * m + 3, S_NA + 1))
        a('s_mov_b64 exec, %s' % sp(S_MK))
        self.st2(qst)
        a('s_mov_b64 exec, -1')
        a('s_waitcnt vmcnt(0)')
        self.lds_add(C_MX, VT + 6, VT + 7, drain=False)
        if o.fa:
            self.b_index(sOff)
            a('s_sub_u32 s%d, s%d, s%d' % (sOff, sOff, S_R))
            a('s_lshl1_add_u32 s7, s%d, s%d' % (sOff, S_R))
            a('s_lshl2_add_u32 s7, s7, s%d' % sC4)
            a('s_lshl_b32 s7, s7, 12')
            a('s_add_u32 s7, s7, 0x%x' % (WS_C1 + 6 * 32768))
            a('v_lshl_add_u32 v160, v1, 7, s7')
            a('s_mov_b64 exec, 0xffffffff')
            a('buffer_load_dword v160, v160, %s, 0 offen sc1%s' % (srd(SRD_WS), '' if o.c1w else ' nt'))
            a('s_mov_b64 exec, -1')
        self.stamp(7)
        a('s_branch L_ASVC')

    def q_abs(self):
        a, o = self.a, self.o
        a.label('L_QABS')
        sC4, sOff, sBb, sSt, sNn = [S_T + 1 + i for i in range(5)]
        sLim = S_T + 12
        X, D, G, UK = 128, 24, 48, 64
        VT, VQA = 8, 5
        a('s_and_b32 s%d, s%d, 3' % (sC4, S_CW))
        a('s_waitcnt lgkmcnt(0)')
        self.mk_srd(SRD_WS, P_WS, WS_SIZE)
        self.stamp(0)
        a('s_barrier')
        if o.ldonly:
            a('s_endpgm')
        a('s_cmp_ge_u32 s%d, 6' % S_R)
        a('s_cbranch_scc1 L_BATT')
        a('v_and_b32 v%d, 3, v1' % VT)
        a('v_lshlrev_b32 v%d, 15, v%d' % (VQA, VT))
        a('v_lshl_add_u32 v%d, v2, 3, v%d' % (VQA, VQA))
        a('v_lshrrev_b32 v%d, 2, v3' % (VT + 2))
        a('v_lshl_add_u32 v%d, v%d, 5, v%d' % (VQA, VT + 2, VQA))
        a('s_lshl_b32 s7, s%d, 1' % S_H)
        a('s_add_u32 s7, s7, s%d' % S_R)
        a('s_lshl_b32 s7, s7, 2')
        a('s_add_u32 s7, s7, s%d' % sC4)
        a('s_lshl_b32 s7, s7, 7')
        a('s_sub_u32 s7, s7, 2048')
        a('v_add_u32 v%d, s7, v%d' % (VQA, VQA))
        a('s_or_b32 s%d, s%d, s%d' % (S_NG + 1, S_NG + 1, S_XCC))
        a('s_add_u32 s%d, s%d, 0x10000' % (sLim, S_NG))
        a('s_addc_u32 s%d, s%d, 0' % (sLim + 1, S_NG + 1))
        LX = a.uniq('G2')

        def tbad(i, m):
            x = G + 4 * i + 2
            a('v_cmp_gt_u64 %s, %s, v[%d:%d]' % (sp(m), sp(S_NG), x, x + 1))
            a('v_cmp_le_u64 vcc, %s, v[%d:%d]' % (sp(sLim), x, x + 1))
            a('s_or_b64 %s, %s, vcc' % (sp(m), sp(m)))
        ld1, gather = self.q_gather(8, sC4, sBb, tbad, limit=(o.k1, LX))
        a('v_xor_b32 v%d, v3, v2' % (VT + 2))
        a('v_lshlrev_b32 v%d, 4, v%d' % (VT + 2, VT + 2))
        a('v_lshl_add_u32 v%d, v3, 8, v%d' % (VT + 2, VT + 2))
        a('s_lshl_b32 s7, s%d, 14' % sC4)
        a('s_add_u32 s7, s7, 0x%x' % L_UK)
        a('v_add_u32 v%d, s7, v%d' % (VT + 2, VT + 2))
        a('s_lshl_b32 s%d, s%d, 4' % (sNn, sC4))
        a('s_add_u32 s%d, s%d, 16' % (sNn, sNn))
        a('s_and_b32 s%d, s%d, 2' % (sSt, sC4))
        a('s_lshl_b32 s%d, s%d, 1' % (sSt, sSt))
        a('s_add_u32 s%d, s%d, 0x%x' % (sSt, sSt, FREE + 8))
        a('v_mul_u32_u24 v%d, 320, v%d' % (VT + 1, VT))
        a('v_lshl_add_u32 v%d, v2, 4, v%d' % (VT + 1, VT + 1))
        a('v_add_u32 v%d, 0x%x, v%d' % (VT + 1, QBUF + 4 * 320, VT + 1))
        self.lds_wait(LAND, o.gdel, VT + 4, VT + 5, sleep=1)
        self.stamp(3)
        LY = gather()

        def phase2():
            a.label(LX)
            a('s_mov_b64 exec, -1')
            self.get_nonce('a', VT + 4)

            def chk():
                a('s_mov_b64 %s, 0' % sp(S_MK4))
                for i in range(2):
                    x = G + 4 * i + 2
                    tbad(i, S_MK3)
                    a('v_cmp_ne_u64 vcc, %s, v[%d:%d]' % (sp(S_NA), x, x + 1))
                    a('s_and_b64 vcc, vcc, %s' % sp(S_MK3))
                    a('s_or_b64 %s, %s, vcc' % (sp(S_MK4), sp(S_MK4)))
            self.poll(lambda: [ld1(0), ld1(1)], chk, 1)
            a('s_branch %s' % LY)
        self.tail.append(phase2)
        self.lds_add(C_QB, G, G + 1, drain=False)
        self.lds_wait(LAND, 's%d' % sNn, VT + 4, VT + 5, sleep=0)
        for ks in range(4):
            a('v_xor_b32 v%d, 0x%x, v%d' % (VT + 3, ks << 6, VT + 2))
            for t in range(4):
                a('ds_read_b128 %s, v%d offset:%d' % (vr(UK + 16 * t + 4 * ks, 4), VT + 3, t * 4096))
        self.lds_add(('s', sSt), VT + 4, VT + 5, val=2, drain=False)
        self.lds_wait(C_QB, 4 + 16, VT + 4, VT + 5, sleep=0)
        for ks in range(4):
            a('ds_read_b128 %s, v%d offset:%d' % (vr(G + 4 * ks, 4), VT + 1, ks * 64))
        DQ = X
        for ks in range(4):
            a('s_waitcnt lgkmcnt(%d)' % (3 - ks))
            for t in range(4):
                a('v_mfma_f32_16x16x32_bf16 %s, %s, %s, %s' % (
                    vr(DQ + 4 * t, 4), vr(UK + 16 * t + 4 * ks, 4), vr(G + 4 * ks, 4),
                    '0' if ks == 0 else vr(DQ + 4 * t, 4)))
        for t in range(4):
            a('v_cvt_pk_bf16_f32 v%d, v%d, v%d' % (D + 2 * t, DQ + 4 * t, DQ + 4 * t + 1))
            a('v_cvt_pk_bf16_f32 v%d, v%d, v%d' % (D + 2 * t + 1, DQ + 4 * t + 2, DQ + 4 * t + 3))
        for t in range(1, 4):
            for k in range(2):
                a('v_mov_b32_dpp v%d, v%d %s row_mask:0xf bank_mask:0x%x' % (D + k, D + 2 * t + k, DPP_ID, 1 << t))
        a('buffer_store_dwordx2 %s, v%d, %s, 0 offen sc1' % (vr(D, 2), VQA, srd(SRD_WS)))
        self.lds_add(C_QB, G, G + 1, val=32, drain=False)
        self.stamp(5)

    def side(self):
        a, o = self.a, self.o
        a.label('L_SIDE')
        sC4, sOff, sBb, sBi, sX = S_T + 1, S_T + 2, S_T + 3, S_T + 4, S_T + 5
        sB, sStart, sN = S_T + 6, S_T + 7, S_T + 8
        LN, LC, LB, LP, LF, LG = [a.uniq(x) for x in ('NC', 'NQ', 'NB', 'NP', 'NF', 'NG')]
        self.zero_lds(10, 24)
        a('s_mov_b32 s%d, s%d' % (sC4, S_CW))
        for k in range(4):
            a('v_mov_b32 v%d, -1' % (28 + k))
        self.b_index(sBi)
        a('s_waitcnt lgkmcnt(0)')
        self.mk_srd(SRD_DBG, P_DBG, 256)
        a('s_or_b32 s7, s%d, s2' % S_CW)
        a('s_cbranch_scc1 %s' % LN)
        a('s_lshl_b64 %s, %s, 5' % (sp(S_NA), sp(S_NG)))
        a('s_or_b32 s%d, s%d, 0x80000000' % (S_NA + 1, S_NA + 1))
        a('v_mov_b32 v12, s%d' % S_NA)
        a('v_mov_b32 v13, s%d' % (S_NA + 1))
        a('s_mov_b64 exec, 1')
        a('buffer_store_dwordx2 v[12:13], v24, %s, 0 offen sc1' % srd(SRD_DBG))
        a('s_mov_b64 exec, -1')
        a.label(LN)
        self.mk_srd(SRD_WS, P_WS, WS_SIZE)
        self.stamp(0)
        if o.sb:
            a('s_barrier')
        a('s_cmp_lt_u32 s%d, 4' % S_R)
        a('s_cbranch_scc1 %s' % LB)
        a('s_cmp_ge_u32 s%d, 6' % S_R)
        a('s_cbranch_scc1 %s' % LC)
        a('s_cmp_lg_u32 s%d, 2' % S_CW)
        a('s_cbranch_scc1 %s' % LB)
        a('s_lshl_b32 s7, s%d, 1' % S_H)
        a('s_add_u32 s7, s7, s%d' % S_R)
        a('s_lshl_b32 s7, s7, 9')
        a('s_sub_u32 s7, s7, 2048')
        a('v_lshl_add_u32 v10, v3, 4, s7')
        a('v_lshl_add_u32 v10, v2, 15, v10')
        a('buffer_store_dwordx4 v[28:31], v10, %s, 0 offen sc1' % srd(SRD_WS))
        a('buffer_store_dwordx4 v[28:31], v10, %s, 0 offen offset:256 sc1' % srd(SRD_WS))
        a('s_branch %s' % LB)
        a.label(LC)
        a('s_lshl_b32 s%d, s%d, 2' % (sX, sBi))
        a('s_add_u32 s%d, s%d, s%d' % (sX, sX, S_CW))
        a('s_and_b32 s7, s%d, 31' % sX)
        a('s_lshl_b32 s7, s7, 13')
        a('s_lshr_b32 s%d, s%d, 3' % (sOff, sBi))
        a('s_lshl_b32 s%d, s%d, 10' % (sOff, sOff))
        a('s_add_u32 s7, s7, s%d' % sOff)
        a('s_add_u32 s7, s7, 0x%x' % WS_CT2)
        a('v_lshl_add_u32 v10, v1, 4, s7')
        a('buffer_store_dwordx4 v[28:31], v10, %s, 0 offen sc1' % srd(SRD_WS))
        a('s_lshl_b32 s7, s%d, 10' % sX)
        a('s_add_u32 s7, s7, 0x%x' % WS_YA)
        a('v_lshl_add_u32 v10, v1, 7, s7')
        a('s_lshl_b32 s%d, s%d, 9' % (sOff, sX))
        for ln, base in [(8 + k, WS_YB + 128 * k) for k in range(4)] + [(15 + k, WS_CD + 128 * k) for k in range(4)]:
            a('s_add_u32 s7, s%d, 0x%x' % (sOff, base))
            a('v_writelane_b32 v10, s7, %d' % ln)
        a('s_lshl_b32 s7, s%d, 7' % sX)
        a('s_add_u32 s7, s7, 0x%x' % WS_ML1)
        a('v_writelane_b32 v10, s7, 12')
        a('s_add_u32 s7, s7, 0x%x' % (WS_ML2 - WS_ML1))
        a('v_writelane_b32 v10, s7, 14')
        a('s_lshl_b32 s7, s%d, 4' % sX)
        a('s_add_u32 s7, s7, 0x%x' % WS_F1)
        a('v_writelane_b32 v10, s7, 13')
        a('s_mov_b64 exec, 0x%x' % o.tmask)
        if True:
            a('buffer_load_dword v15, v10, %s, 0 offen sc1' % srd(SRD_WS))
        a('s_mov_b64 exec, -1')
        if o.cpf:
            a('s_getpc_b64 %s' % sp(S_MK))
            a.label('L_PC')
            a('s_and_b32 s7, s%d, 31' % sX)
            a('s_mul_i32 s7, s7, 1280')
            a('v_lshl_add_u32 v10, v1, 7, s7')
            a('v_min_u32 v10, L_END-%s_kernel, v10' % NAME)
            a('s_sub_u32 s%d, s%d, L_PC-%s_kernel' % (S_MK, S_MK, NAME))
            a('s_subb_u32 s%d, s%d, 0' % (S_MK + 1, S_MK + 1))
            a('v_mov_b32 v11, s%d' % (S_MK + 1))
            a('v_add_co_u32 v10, vcc, s%d, v10' % S_MK)
            a('v_addc_co_u32 v11, vcc, 0, v11, vcc')
            a('s_mov_b64 exec, 0x3ff')
            a('global_load_dword v15, v[10:11], off')
            a('s_mov_b64 exec, -1')
        a.label(LB)
        if not o.sb:
            a('s_barrier')
        if o.ldonly:
            a('s_endpgm')
        a('s_cmp_lg_u32 s%d, 0' % S_CW)
        a('s_cbranch_scc1 %s' % LF)
        self.fetch_nonce(11, 24)
        a.label(LF)
        a('s_cmp_lg_u32 s%d, 1' % S_CW)
        a('s_cbranch_scc1 %s' % LP)
        a('s_lshl_b32 s%d, s%d, 7' % (sX, S_H))
        a('s_add_u32 s%d, s%d, 0x%x' % (sX, sX, WS_GF))
        a('s_lshr_b32 s7, s%d, 3' % sBi)
        a('s_lshl_b32 s7, s7, 7')
        a('s_add_u32 s7, s7, 0x%x' % WS_XF)
        a('s_and_b32 s%d, s%d, 7' % (sOff, sBi))
        a('s_cmp_lt_u32 s%d, 6' % S_R)
        a('s_cselect_b32 s7, s%d, s7' % sX)
        a('s_cselect_b32 s%d, s%d, s%d' % (sOff, S_R, sOff))
        a('v_lshl_add_u32 v11, v1, 3, s7')
        a('s_sleep %d' % o.adel)
        a('s_memrealtime %s' % sp(S_MK3))
        a('s_waitcnt lgkmcnt(0)')
        a('s_or_b32 s%d, s%d, s%d' % (S_MK3 + 1, S_MK3 + 1, S_XCC))
        a('v_mov_b32 v12, s%d' % S_MK3)
        a('v_mov_b32 v13, s%d' % (S_MK3 + 1))
        a('s_lshl_b64 exec, 1, s%d' % sOff)
        a('buffer_store_dwordx2 v[12:13], v11, %s, 0 offen' % srd(SRD_WS))
        a('s_mov_b64 exec, -1')
        a.label(LP)
        self.stamp(1)
        a('s_cmp_ge_u32 s%d, 6' % S_R)
        a('s_cbranch_scc1 L_BATT')
        a('s_cmp_lt_u32 s%d, 4' % S_R)
        a('s_cbranch_scc1 %s' % LG)
        a('s_cmp_lg_u32 s%d, 2' % S_CW)
        a('s_cbranch_scc1 %s' % LG)
        a('s_lshl_b32 s7, s%d, 4' % S_H)
        a('s_add_u32 s7, s7, s%d' % S_R)
        a('s_lshl_b32 s7, s7, 3')
        a('s_add_u32 s7, s7, 0x%x' % (WS_FLAG - 32))
        a('v_mov_b32 v11, s7')
        a('s_waitcnt vmcnt(0)')
        self.stamp(10)
        self.lds_add(C_QB, 12, 13, val=16, drain=False)
        self.get_nonce('a', 16)
        a('s_mov_b64 exec, 1')
        a('buffer_store_dwordx2 v[18:19], v11, %s, 0 offen sc1' % srd(SRD_WS))
        a('s_mov_b64 exec, -1')
        a.label(LG)
        self.load_tab()
        self.wave_tab(sC4, sB, sStart, sN)
        sLim = S_T + 12
        a('s_or_b32 s%d, s%d, s%d' % (S_NG + 1, S_NG + 1, S_XCC))
        a('s_add_u32 s%d, s%d, 0x10000' % (sLim, S_NG))
        a('s_addc_u32 s%d, s%d, 0' % (sLim + 1, S_NG + 1))

        def qbad(i, m):
            x = 48 + 4 * i + 2
            a('v_cmp_gt_u64 %s, %s, v[%d:%d]' % (sp(m), sp(S_NG), x, x + 1))
            a('v_cmp_le_u64 vcc, %s, v[%d:%d]' % (sp(sLim), x, x + 1))
            a('s_or_b64 %s, %s, vcc' % (sp(m), sp(m)))
            a('v_cmp_ne_u64 vcc, %s, v[%d:%d]' % (sp(S_NA), x, x + 1))
            a('s_and_b64 %s, %s, vcc' % (sp(m), sp(m)))
        ld1, gather = self.q_gather(0, sB, sBb, qbad, sleep=4)
        self.get_nonce('a', 16)
        a('s_cmp_lt_u32 s%d, 4' % S_R)
        a('s_cselect_b32 s%d, 16, 148' % sX)
        a('s_cselect_b32 s7, 0, %d' % ((C_QB - C_MX) & 0xffffffff))
        a('s_add_u32 s7, s7, 0x%x' % C_MX)
        self.lds_wait('s7', 's%d' % sX, 12, 13, sleep=4)
        a('s_sleep %d' % o.gdela)
        gather()

    def a_att(self):
        a, o = self.a, self.o
        a.label('L_AATT')
        sC4, sOff, sBb = S_T + 1, S_T + 2, S_T + 3
        sB, sStart, sN = S_T + 6, S_T + 7, S_T + 8
        sSlot, sThr, sI, sC, sTot, sThV = [S_T + 9 + i for i in range(6)]
        Q, KF, D, ACC, AD, P = 16, 32, 64, 72, 104, 112
        VK0, VV0, VSW, VPR, T, VML, ML = 4, 5, 6, 7, 8, 12, 116
        a('v_lshl_add_u32 v%d, v2, 4, s%d' % (T, sBb))
        a('s_waitcnt lgkmcnt(0)')
        for ks in range(4):
            a('ds_read_b128 %s, v%d offset:%d' % (vr(Q + 4 * ks, 4), T, ks * 64))
        a('v_xor_b32 v%d, v3, v2' % VK0)
        a('v_lshlrev_b32 v%d, 4, v%d' % (VK0, VK0))
        a('v_lshl_add_u32 v%d, v3, 8, v%d' % (VK0, VK0))
        a('v_lshrrev_b32 v%d, 2, v1' % (T + 1))
        a('v_and_b32 v%d, 7, v%d' % (VV0, T + 1))
        a('v_lshlrev_b32 v%d, 5, v%d' % (VV0, VV0))
        a('v_lshl_add_u32 v%d, v%d, 8, v%d' % (VV0, T + 1, VV0))
        a('v_and_b32 v%d, 3, v1' % (T + 2))
        a('v_lshl_add_u32 v%d, v%d, 3, v%d' % (VV0, T + 2, VV0))
        a('s_lshl_b32 s7, s%d, 10' % sC4)
        a('s_add_u32 s7, s7, 0x%x' % SCB)
        a('v_lshl_add_u32 v%d, v2, 4, s7' % VSW)
        a('v_cmp_eq_u32 %s, 0, v3' % sp(S_MK))
        a('s_mov_b32 s%d, 0x%x' % (sC, f32bits(SCALE_LOG2E)))
        a('s_cmp_ge_u32 s%d, 4' % S_R)
        a('s_cselect_b32 s%d, %d, %d' % (sTot, (K0E + self.NE) % NSLOT, (K0A + self.NA) % NSLOT))
        a('s_cselect_b32 s%d, %d, %d' % (sSlot, K0E, K0A))
        a('s_cselect_b32 s%d, %d, %d' % (sThr, (PWE + 8 * K0E + 8) // 8, (PWA + 8 * K0A + 8) // 8))
        a('s_cselect_b32 s%d, %d, %d' % (sThV, self.NE, self.NA))
        a('s_add_u32 s%d, s%d, s%d' % (sThr, sThr, sC4))
        a('s_add_u32 s%d, s%d, s%d' % (sThV, sThV, sThr))
        a('s_lshl_b32 s%d, s%d, 3' % (sThr, sThr))
        a('s_add_u32 s%d, s%d, s%d' % (sSlot, sSlot, sC4))
        a('s_cmp_ge_u32 s%d, %d' % (sSlot, NSLOT))
        a('s_cselect_b32 s7, %d, 0' % NSLOT)
        a('s_sub_u32 s%d, s%d, s7' % (sSlot, sSlot))
        a('s_mov_b32 s%d, s%d' % (sI, sN))

        def nxt():
            a('s_add_u32 s%d, s%d, 4' % (sSlot, sSlot))
            a('s_cmp_ge_u32 s%d, %d' % (sSlot, NSLOT))
            a('s_cselect_b32 s7, %d, 0' % NSLOT)
            a('s_sub_u32 s%d, s%d, s7' % (sSlot, sSlot))
            a('s_add_u32 s%d, s%d, 32' % (sThr, sThr))
            a('s_sub_u32 s%d, s%d, 1' % (sI, sI))
            a('s_cmp_lg_u32 s%d, 0' % sI)

        def free_addr():
            a('s_and_b32 s%d, s%d, 12' % (sOff, sSlot))
            a('s_add_u32 s%d, s%d, 0x%x' % (sOff, sOff, FREE))
        LK = a.uniq('AK')
        a.label(LK)
        a('s_lshl_b32 s7, s%d, 13' % sSlot)
        a('v_add_u32 v%d, s7, v%d' % (AD, VK0))
        for ks in range(1, 4):
            a('v_xor_b32 v%d, 0x%x, v%d' % (AD + ks, ks << 6, AD))
        free_addr()
        self.lds_wait(LAND, 's%d' % sThr, T, T + 1, sleep=2)
        for ks in range(4):
            for t in range(2):
                a('ds_read_b128 %s, v%d offset:%d' % (vr(KF + 8 * ks + 4 * t, 4), AD + ks, t * 4096))
        for ks in range(4):
            a('s_waitcnt lgkmcnt(%d)' % (6 - 2 * ks))
            for t in range(2):
                a('v_mfma_f32_16x16x32_bf16 %s, %s, %s, %s' % (
                    vr(D + 4 * t, 4), vr(KF + 8 * ks + 4 * t, 4), vr(Q + 4 * ks, 4), '0' if ks == 0 else vr(D + 4 * t, 4)))
        self.lds_add(('s', sOff), T, T + 1, drain=False)
        a('s_mov_b64 exec, %s' % sp(S_MK))
        for t in range(2):
            a('ds_write_b128 v%d, %s offset:%d' % (VSW, vr(D + 4 * t, 4), t * 64))
        a('s_mov_b64 exec, -1')
        a('v_add_u32 v%d, 128, v%d' % (VSW, VSW))
        nxt()
        a('s_cbranch_scc1 %s' % LK)
        self.stamp(6)
        S = KF
        a('v_lshrrev_b32 v%d, 2, v1' % T)
        a('v_cmp_gt_u32 %s, s%d, v%d' % (sp(S_MK2), sN, T))
        a('v_and_b32 v%d, 7, v%d' % (T, T))
        a('v_and_b32 v%d, 3, v1' % (T + 1))
        a('v_lshlrev_b32 v%d, 4, v%d' % (T + 1, T + 1))
        a('v_lshl_add_u32 v%d, v%d, 7, v%d' % (T + 2, T, T + 1))
        a('s_lshl_b32 s7, s%d, 10' % sC4)
        a('s_add_u32 s7, s7, 0x%x' % SCB)
        a('v_add_u32 v%d, s7, v%d' % (T + 2, T + 2))
        a('s_waitcnt lgkmcnt(0)')
        a('ds_read_b128 %s, v%d' % (vr(S, 4), T + 2))
        a('ds_read_b128 %s, v%d offset:64' % (vr(S + 4, 4), T + 2))
        a('s_lshl_b32 s7, s%d, 9' % sC4)
        a('s_add_u32 s7, s7, 0x%x' % PBA)
        a('v_lshl_add_u32 v%d, v%d, 6, v%d' % (T + 2, T, T + 1))
        a('v_add_u32 v%d, s7, v%d' % (T + 2, T + 2))
        a('v_lshl_add_u32 v%d, v2, 4, s7' % VPR)
        a('v_mov_b32 v%d, 0xff800000' % (T + 3))
        a('s_waitcnt lgkmcnt(0)')
        for k in range(8):
            a('v_cndmask_b32 v%d, v%d, v%d, %s' % (S + k, T + 3, S + k, sp(S_MK2)))
        M, Ls = D, D + 1
        a('v_max3_f32 v%d, v%d, v%d, v%d' % (M, S, S + 1, S + 2))
        a('v_max3_f32 v%d, v%d, v%d, v%d' % (M, M, S + 3, S + 4))
        a('v_max3_f32 v%d, v%d, v%d, v%d' % (M, M, S + 5, S + 6))
        a('v_max_f32 v%d, v%d, v%d' % (M, M, S + 7))
        self.ror('v_max_f32', [M], [1, 2, 4, 8])
        self.xlane_rows('v_max_f32', [M], T + 3)
        a('v_mul_f32 v%d, s%d, v%d' % (M, sC, M))
        for k in range(8):
            a('v_fma_f32 v%d, v%d, s%d, -v%d' % (S + k, S + k, sC, M))
        for k in range(8):
            a('v_exp_f32 v%d, v%d' % (S + k, S + k))
        for k in range(4):
            a('v_cvt_pk_bf16_f32 v%d, v%d, v%d' % (P + k, S + 2 * k, S + 2 * k + 1))
        a('s_mov_b64 exec, %s' % sp(S_MK2))
        a('ds_write_b128 v%d, %s' % (T + 2, vr(P, 4)))
        a('s_mov_b64 exec, -1')
        for st in (4, 2, 1):
            for k in range(st):
                a('v_add_f32 v%d, v%d, v%d' % (S + k, S + k, S + k + st))
        a('v_mov_b32 v%d, v%d' % (Ls, S))
        self.ror('v_add_f32', [Ls], [1, 2, 4, 8])
        self.xlane_rows('v_add_f32', [Ls], T + 3)
        self.verdict(T, T + 1)
        a('v_mov_b32 v%d, s%d' % (D + 2, S_NA))
        a('v_mov_b32 v%d, s%d' % (D + 3, S_NA + 1))
        a('s_lshl_b32 s7, s%d, 2' % S_H)
        a('s_add_u32 s7, s7, s%d' % sB)
        a('s_lshl_b32 s7, s7, 3')
        a('s_add_u32 s7, s7, s%d' % S_R)
        a('s_lshl_b32 s7, s7, 4')
        a('s_add_u32 s7, s7, 0x%x' % WS_MLA)
        a('v_mov_b32 v%d, s7' % T)
        a('s_mov_b64 exec, 1')
        self.st2(['buffer_store_dwordx4 %s, v%d, %s, 0 offen' % (vr(D, 4), T, srd(SRD_WS))])
        a('s_mov_b64 exec, -1')
        a('s_and_b32 s7, s7, -128')
        a('v_lshl_add_u32 v%d, v1, 4, s7' % VML)
        a('v_or_b32 v%d, 1, v%d' % (D + 6, D + 2))
        a('v_mov_b32 v%d, v%d' % (D + 7, D + 3))
        a('v_mov_b32 v%d, 0xff800000' % ML)
        a('v_mov_b32 v%d, 0' % (ML + 1))
        for k in range(32):
            a('v_mov_b32 v%d, 0' % (ACC + k))
        a('s_lshl_b32 s7, s%d, 4' % S_H)
        a('s_add_u32 s7, s7, s%d' % S_R)
        a('s_lshl_b32 s7, s7, 2')
        a('s_add_u32 s7, s7, s%d' % sB)
        a('s_lshl_b32 s7, s7, 9')
        a('s_add_u32 s7, s7, 0x%x' % WS_QP)
        a('v_lshl_add_u32 v%d, v1, 4, s7' % VSW)
        LE = a.uniq('AE')
        a('s_cmp_lt_u32 s%d, 4' % S_R)
        a('s_cbranch_scc1 %s' % LE)
        self.pretouch(VSW, 13, '0x01010101')
        a.label(LE)
        a('s_add_u32 s%d, s%d, s%d' % (sSlot, sTot, sC4))
        a('s_lshl_b32 s%d, s%d, 3' % (sThr, sThV))
        a('s_cmp_ge_u32 s%d, %d' % (sSlot, NSLOT))
        a('s_cselect_b32 s7, %d, 0' % NSLOT)
        a('s_sub_u32 s%d, s%d, s7' % (sSlot, sSlot))
        a('s_mov_b32 s%d, s%d' % (sI, sN))
        self.stamp(7)
        LV = a.uniq('AV')
        a.label(LV)
        a('s_lshl_b32 s7, s%d, 13' % sSlot)
        a('v_add_u32 v%d, s7, v%d' % (AD, VV0))
        for t in range(1, 8):
            a('v_xor_b32 v%d, 0x%x, v%d' % (AD + t, t << 5, AD))
        free_addr()
        a('ds_read_b128 %s, v%d' % (vr(P, 4), VPR))
        a('v_add_u32 v%d, 64, v%d' % (VPR, VPR))
        LW, LWB = a.uniq('AW'), a.uniq('AWB')
        a('s_cmp_le_u32 s%d, 2' % sI)
        a('s_cbranch_scc1 %s' % LW)
        a.label(LWB)

        def weight():
            L1 = a.uniq('AX')
            mll = 'buffer_load_dwordx4 %s, v%d, %s, 0 offen sc1 nt' % (vr(ML, 4), VML, srd(SRD_WS))
            a.label(LW)
            a('s_mov_b64 exec, 0x3f')
            a('s_cmp_eq_u32 s%d, 1' % sI)
            a('s_cbranch_scc1 %s' % L1)
            a(mll)
            a('s_mov_b64 exec, -1')
            a('s_branch %s' % LWB)
            a.label(L1)
            self.poll(lambda: a(mll), lambda: self.tags_bad([ML + 2], S_NA), 2, first_issued=True)
            a('s_mov_b64 exec, -1')
            a('v_mov_b32 v%d, v%d' % (ML + 2, ML))
            self.ror('v_max_f32', [ML + 2], [1, 2, 4, 8])
            a('v_sub_f32 v%d, v%d, v%d' % (ML, ML, ML + 2))
            a('v_sub_f32 v%d, v%d, v%d' % (ML + 3, D, ML + 2))
            a('v_exp_f32 v%d, v%d' % (ML, ML))
            a('v_exp_f32 v%d, v%d' % (ML + 3, ML + 3))
            a('v_mul_f32 v%d, v%d, v%d' % (ML, ML, ML + 1))
            self.ror('v_add_f32', [ML], [1, 2, 4, 8])
            a('v_rcp_f32 v%d, v%d' % (ML, ML))
            a('v_mul_f32 v%d, v%d, v%d' % (ML, ML, ML + 3))
            a('v_readfirstlane_b32 s%d, v%d' % (sC, ML))
            a('s_cmp_lt_u32 s%d, 4' % S_R)
            a('s_cselect_b32 s7, 20, 0')
            self.lds_wait(C_MX, 's7', T, T + 1, sleep=1)
            a('s_branch %s' % LWB)
        self.tail.append(weight)
        self.lds_wait(LAND, 's%d' % sThr, T, T + 1, sleep=1)
        for t in range(8):
            if t == 7:
                a('s_waitcnt lgkmcnt(12)')
                a('v_mfma_f32_16x16x32_bf16 %s, %s, %s, %s' % (vr(ACC, 4), vr(P, 4), vr(KF, 4), vr(ACC, 4)))
            a('ds_read_b64_tr_b16 v[%d:%d], v%d' % (KF + 4 * t, KF + 4 * t + 1, AD + t))
            a('ds_read_b64_tr_b16 v[%d:%d], v%d offset:4096' % (KF + 4 * t + 2, KF + 4 * t + 3, AD + t))
        for t in range(1, 8):
            a('s_waitcnt lgkmcnt(%d)' % (14 - 2 * t))
            a('v_mfma_f32_16x16x32_bf16 %s, %s, %s, %s' % (
                vr(ACC + 4 * t, 4), vr(P, 4), vr(KF + 4 * t, 4), vr(ACC + 4 * t, 4)))
        self.lds_add(('s', sOff), T, T + 1, drain=False)
        nxt()
        a('s_cbranch_scc1 %s' % LV)
        self.stamp(8)
        for i in range(4):
            a('v_mov_b32_dpp v%d, v%d %s row_mask:0x2 bank_mask:0xf' % (ACC + 4 * i, ACC + 16 + 4 * i, DPP_ID))
        for i in range(4):
            a('v_mul_f32 v%d, s%d, v%d' % (ACC + 4 * i, sC, ACC + 4 * i))
        a('v_cvt_pk_bf16_f32 v%d, v%d, v%d' % (D + 4, ACC, ACC + 4))
        a('v_cvt_pk_bf16_f32 v%d, v%d, v%d' % (D + 5, ACC + 8, ACC + 12))
        a('s_mov_b64 exec, 0xffffffff')
        self.st2(['buffer_store_dwordx4 %s, v%d, %s, 0 offen' % (vr(D + 4, 4), VSW, srd(SRD_WS))])
        a('s_mov_b64 exec, -1')
        self.lds_add(C_O, T, T + 1, drain=False)
        self.stamp(9)
        self.end()

    def a_svc(self):
        a, o = self.a, self.o
        a.label('L_ASVC')
        sC4, sOff, sX, MS = S_T + 1, S_T + 2, S_T + 3, S_T + 4
        FW, OPD, D1, ML, G, S = 32, 64, 96, 16, 112, 104
        VW, VOP, VOW, VOR, VY, T = 4, 5, 6, 7, 8, 24
        sK = S_T + 10
        w0, hfo = (2 * self.NA) % NSLOT, 16384
        a('v_bfe_u32 v%d, v1, 2, 2' % T)
        a('v_lshl_add_u32 v%d, v%d, 4, v2' % (VW, T))
        a('v_lshlrev_b32 v%d, 8, v%d' % (VW, VW))
        a('v_and_b32 v%d, 1, v2' % (T + 1))
        a('v_lshl_or_b32 v%d, v%d, 1, v%d' % (T, T, T + 1))
        a('s_lshl_b32 s7, s%d, 1' % sC4)
        a('v_xor_b32 v%d, s7, v%d' % (T, T))
        a('v_lshl_add_u32 v%d, v%d, 5, v%d' % (VW, T, VW))
        a('v_and_b32 v%d, 3, v1' % T)
        a('v_lshl_add_u32 v%d, v%d, 3, v%d' % (VW, T, VW))
        a('v_add_u32 v%d, 0x%x, v%d' % (VW, w0 * 8192, VW))
        a('v_xor_b32 v9, 32, v%d' % VW)

        def frags():
            for ks in range(4):
                for t in range(2):
                    f = FW + 16 * t + 4 * ks
                    a('ds_read_b64_tr_b16 v[%d:%d], v%d offset:%d' % (f, f + 1, (VW, 9)[t], ks * 1024))
                    a('ds_read_b64_tr_b16 v[%d:%d], v%d offset:%d' % (f + 2, f + 3, (VW, 9)[t], ks * 1024 + hfo))
        a('v_lshlrev_b32 v%d, 16, v%d' % (VY, T))
        a('v_and_b32 v%d, 4, v1' % (T + 2))
        a('v_lshl_add_u32 v%d, v%d, 4, v%d' % (VY, T + 2, VY))
        a('v_lshl_add_u32 v%d, v2, 4, v%d' % (VY, VY))
        a('s_lshl_b32 s7, s%d, 2' % S_R)
        a('s_add_u32 s7, s7, s%d' % sC4)
        a('s_lshl_b32 s7, s7, 5')
        a('s_add_u32 s7, s7, s%d' % S_H)
        a('s_lshl_b32 s7, s7, 7')
        a('s_add_u32 s7, s7, 0x%x' % WS_YA)
        a('v_add_u32 v%d, s7, v%d' % (VY, VY))
        a('v_cmp_gt_u32 %s, 8, v3' % sp(S_MK))
        a('s_lshl_b32 s7, s%d, 15' % S_H)
        a('s_lshl_b32 s%d, s%d, 9' % (sOff, sC4))
        a('s_add_u32 s7, s7, s%d' % sOff)
        a('s_add_u32 s7, s7, 0x%x' % WS_QP)
        a('v_and_b32 v%d, 31, v1' % (T + 2))
        a('v_lshl_add_u32 v%d, v%d, 4, s7' % (VOP, T + 2))
        a('v_lshrrev_b32 v%d, 5, v1' % (T + 2))
        a('v_lshl_add_u32 v%d, v%d, 11, v%d' % (VOP, T + 2, VOP))
        a('s_mul_i32 s7, s%d, 320' % sC4)
        a('s_add_u32 s7, s7, 0x%x' % OB)
        a('v_lshl_add_u32 v%d, v3, 4, s7' % VOW)
        a('v_lshl_add_u32 v%d, v%d, 3, v%d' % (VOW, T + 1, VOW))
        a('v_lshl_add_u32 v%d, v%d, 2, v%d' % (VOW, T + 2, VOW))
        a('v_mul_u32_u24 v%d, 320, v%d' % (VOR, T))
        a('v_lshl_add_u32 v%d, v2, 4, v%d' % (VOR, VOR))
        a('v_add_u32 v%d, 0x%x, v%d' % (VOR, OB, VOR))
        if o.yst & 1:
            for k in range(4):
                a('v_mov_b32 v%d, 0' % (D1 + k))
            a('s_mov_b64 exec, %s' % sp(S_MK))
            a('buffer_store_dwordx4 %s, v%d, %s, 0 offen sc1' % (vr(D1, 4), VY, srd(SRD_WS)))
            a('s_mov_b64 exec, -1')
        a('s_or_b64 %s, %s, 1' % (sp(S_NG), sp(S_NA)))
        a('v_mov_b32 v%d, s%d' % (ML + 2, S_NA))
        a('v_mov_b32 v%d, s%d' % (ML + 3, S_NA + 1))
        a('s_mov_b32 s%d, 4096' % sOff)
        a('s_mov_b32 s%d, 8192' % sX)
        a('s_mov_b32 s%d, 0x3f80' % sK)
        a('s_mov_b32 s%d, 0x3f800000' % (sK + 1))
        self.stamp(11)
        self.lds_wait(C_O, 4, T + 4, T + 5, sleep=2)
        a('s_setprio 2')
        self.stamp(12)

        def late():
            self.lds_wait(LAND, PWA + 16 * self.NA + 32, T + 4, T + 5, sleep=0)
            frags()
        self.mpoll(3, lambda i: a('buffer_load_dwordx4 %s, v%d, %s, %s offen sc1 nt' % (
            vr(G + 4 * i, 4), VOP, srd(SRD_WS), ('0', 's%d' % sOff, 's%d' % sX)[i])), lambda i: G + 4 * i + 2, MS, 0,
            non=S_NG, first=late)
        for i in range(3):
            for k in range(4):
                a('v_dot2_f32_bf16 v%d, v%d, s%d, %s' % (
                    S + k, G + 4 * i + (k >> 1), sK + (k & 1), '0' if i == 0 else 'v%d' % (S + k)))
        a('v_permlane32_swap_b32 v%d, v%d' % (S, S + 2))
        a('v_permlane32_swap_b32 v%d, v%d' % (S + 1, S + 3))
        a('v_add_f32 v%d, v%d, v%d' % (S, S, S + 2))
        a('v_add_f32 v%d, v%d, v%d' % (S + 1, S + 1, S + 3))
        a('v_cvt_pk_bf16_f32 v%d, v%d, v%d' % (S, S, S + 1))
        a('ds_write_b32 v%d, v%d' % (VOW, S))
        self.stamp(13)
        self.sync(T, T + 1, 4)
        for ks in range(4):
            a('ds_read_b128 %s, v%d offset:%d' % (vr(OPD + 4 * ks, 4), VOR, ks * 64))
        for ks in range(4):
            a('s_waitcnt lgkmcnt(%d)' % (3 - ks))
            for t in range(2):
                a('v_mfma_f32_16x16x32_bf16 %s, %s, %s, %s' % (
                    vr(D1 + 4 * t, 4), vr(FW + 16 * t + 4 * ks, 4), vr(OPD + 4 * ks, 4),
                    '0' if ks == 0 else vr(D1 + 4 * t, 4)))
        a('v_cvt_pk_bf16_f32 v%d, v%d, v%d' % (ML, D1, D1 + 1))
        a('v_cvt_pk_bf16_f32 v%d, v%d, v%d' % (ML + 1, D1 + 2, D1 + 3))
        a('v_cvt_pk_bf16_f32 v%d, v%d, v%d' % (S, D1 + 4, D1 + 5))
        a('v_cvt_pk_bf16_f32 v%d, v%d, v%d' % (S + 1, D1 + 6, D1 + 7))
        for k in range(2):
            a('v_mov_b32_dpp v%d, v%d %s row_mask:0xf bank_mask:0x2' % (ML + k, S + k, DPP_ID))
        a('s_mov_b64 exec, %s' % sp(S_MK))
        a('buffer_store_dwordx4 %s, v%d, %s, 0 offen sc1' % (vr(ML, 4), VY, srd(SRD_WS)))
        a('s_mov_b64 exec, -1')
        self.stamp(14)
        self.end_red()

    def e_svc(self):
        a, o = self.a, self.o
        a.label('L_ESVC')
        sC4, sOff, MS = S_T + 1, S_T + 2, S_T + 4
        FU, FO, X, T = 32, 96, 16, 160
        VML, VX, VCW, VCR, VOW, VOR, VY, W = 4, 5, 6, 7, 8, 9, 10, 11
        a('v_lshrrev_b32 v%d, 2, v1' % T)
        a('v_and_b32 v%d, 7, v%d' % (T + 1, T))
        a('s_lshl_b32 s7, s%d, 1' % sC4)
        a('v_xor_b32 v%d, s7, v%d' % (T + 1, T + 1))
        a('v_lshlrev_b32 v%d, 5, v%d' % (T + 1, T + 1))
        a('v_lshl_add_u32 v%d, v%d, 8, v%d' % (T + 1, T, T + 1))
        a('v_and_b32 v%d, 3, v1' % (T + 2))
        a('v_lshl_add_u32 v%d, v%d, 3, v%d' % (T + 1, T + 2, T + 1))
        a('v_lshrrev_b32 v%d, 5, v1' % (T + 3))
        a('s_lshl_b32 s7, s%d, 8' % sC4)
        a('s_lshl_b32 s%d, s%d, 10' % (sOff, S_H))
        a('s_add_u32 s7, s7, s%d' % sOff)
        a('s_add_u32 s%d, s7, 0x%x' % (sOff, WS_ML2))
        a('v_lshl_add_u32 v%d, v%d, 7, s%d' % (VML, T + 3, sOff))
        a('s_lshl_b32 s7, s7, 3')
        a('s_lshl_b32 s%d, s%d, 9' % (sOff, S_R))
        a('s_add_u32 s7, s7, s%d' % sOff)
        a('s_add_u32 s7, s7, 0x%x' % (WS_CT2 - 2048))
        a('v_and_b32 v%d, 31, v1' % (T + 4))
        a('v_lshl_add_u32 v%d, v%d, 4, s7' % (VX, T + 4))
        a('v_lshl_add_u32 v%d, v%d, 10, v%d' % (VX, T + 3, VX))
        a('s_mul_i32 s7, s%d, 576' % sC4)
        a('s_add_u32 s7, s7, 0x%x' % CLAT)
        a('v_lshrrev_b32 v%d, 2, v%d' % (T + 4, T + 4))
        a('v_lshl_add_u32 v%d, v%d, 6, s7' % (VCW, T + 4))
        a('v_lshl_add_u32 v%d, v%d, 4, v%d' % (VCW, T + 3, VCW))
        a('v_and_b32 v%d, 1, v1' % (T + 4))
        a('v_lshl_add_u32 v%d, v%d, 5, v%d' % (VCW, T + 4, VCW))
        a('v_and_b32 v%d, 2, v1' % (T + 4))
        a('v_lshl_add_u32 v%d, v%d, 2, v%d' % (VCW, T + 4, VCW))
        a('v_mul_u32_u24 v%d, 576, v%d' % (VCR, T + 2))
        a('v_lshl_add_u32 v%d, v2, 4, v%d' % (VCR, VCR))
        a('v_add_u32 v%d, 0x%x, v%d' % (VCR, CLAT, VCR))
        a('v_cmp_gt_u32 %s, 8, v3' % sp(S_MK))
        self.b_index(sOff)
        a('s_add_u32 s%d, s%d, 2' % (sOff, sOff))
        a('s_lshl_b32 s7, s%d, 11' % sOff)
        a('s_lshl_b32 s%d, s%d, 9' % (MS, sC4))
        a('s_add_u32 s7, s7, s%d' % MS)
        a('s_add_u32 s7, s7, 0x%x' % WS_CD)
        a('v_lshl_add_u32 v%d, v3, 6, s7' % VY)
        a('v_lshl_add_u32 v%d, v2, 4, v%d' % (VY, VY))
        a('s_lshr_b32 s7, s%d, 3' % sOff)
        a('s_lshl_b32 s7, s7, 7')
        a('s_add_u32 s7, s7, 0x%x' % WS_XF)
        a('v_and_b32 v%d, 7, v1' % (T + 4))
        a('v_lshl_add_u32 v%d, v%d, 3, s7' % (VOR, T + 4))
        self.get_nonce('a', X)
        self.lds_wait(LAND, PWE + 64, X, X + 1, sleep=4)
        a('v_xor_b32 v%d, 32, v%d' % (T + 2, T + 1))
        for ks in range(8):
            for tt in range(2):
                f = FU + 8 * ks + 4 * tt
                a('ds_read_b64_tr_b16 v[%d:%d], v%d offset:%d' % (f, f + 1, T + 1 + tt, ks * 8192))
                a('ds_read_b64_tr_b16 v[%d:%d], v%d offset:%d' % (f + 2, f + 3, T + 1 + tt, ks * 8192 + 4096))
            if ks & 1:
                a('s_waitcnt lgkmcnt(4)')
        self.lds_add(FREE, X, X + 1, lanes=2, drain=False)
        if o.c1w in (0, 3) and not o.fa:
            a('s_lshl_b32 s7, s%d, 2' % sOff)
            a('s_add_u32 s7, s7, s%d' % sC4)
            a('s_lshl_b32 s7, s7, 13')
            a('s_add_u32 s7, s7, 0x%x' % WS_C1)
            a('v_lshl_add_u32 v%d, v1, 7, s7' % VOW)
            a('buffer_load_dword v%d, v%d, %s, 0 offen sc1%s' % (VOW, VOW, srd(SRD_WS), '' if o.c1w else ' nt'))
        self.stamp(10)
        self.group_check(X)
        self.local(VOR, X, '0xff', 4, 8)
        ML = 12
        a('s_and_b32 s7, s%d, 7' % S_H)
        a('s_lshl_b32 s7, s7, 12')
        a('s_add_u32 s7, s7, 0x%x' % (WS_ML1 + 8))
        a('v_lshl_add_u32 v%d, v1, 9, s7' % VOR)
        a('s_mov_b32 s%d, 1' % S_MK2)
        a('s_mov_b32 s%d, 1' % (S_MK2 + 1))
        self.mpoll(1, lambda i: a('buffer_load_dwordx2 %s, v%d, %s, 0 offen offset:16 sc1' % (vr(ML, 2), VML, srd(SRD_WS))),
                   lambda i: ML, MS, 8, base=sp(S_MK2))
        LH = a.uniq('EH')
        a('s_cmp_eq_u32 s%d, 0' % S_UNI)
        a('s_cbranch_scc1 %s' % LH)
        self.mpoll(1, lambda i: a('buffer_load_dwordx2 %s, v%d, %s, 0 offen sc1 nt' % (vr(ML, 2), VOR, srd(SRD_WS))),
                   lambda i: ML, MS, 6, base='0xff')
        a.label(LH)
        if o.edel:
            a('s_sleep %d' % o.edel)
        self.stamp(11)
        a('s_setprio 2')

        def xl(i):
            a('buffer_load_dwordx4 %s, v%d, %s, 0 offen sc1' % (vr((X, ML)[i], 4), (VX, VML)[i], srd(SRD_WS)))

        def xbad(i, m):
            if i == 1:
                a('v_cmp_ne_u64 %s, %s, v[%d:%d]' % (sp(m), sp(S_NA), ML + 2, ML + 3))
                return
            a('v_max3_u32 v%d, v%d, v%d, v%d' % (T, X, X + 1, X + 2))
            a('v_max_u32 v%d, v%d, v%d' % (T, T, X + 3))
            a('v_cmp_eq_u32 %s, -1, v%d' % (sp(m), T))
        self.mpoll(2, xl, None, MS, 0, bad=xbad)
        self.stamp(12)
        U = X + 4
        a('v_mov_b32 v%d, v%d' % (T, ML))
        a('v_mov_b32 v%d, v%d' % (T + 1, ML))
        for k in range(4):
            a('v_lshlrev_b32 v%d, 16, v%d' % (U + 2 * k, X + k))
        a('v_permlane32_swap_b32 v%d, v%d' % (T, T + 1))
        a('v_max_f32 v%d, v%d, v%d' % (T, T, T + 1))
        a('v_sub_f32 v%d, v%d, v%d' % (W, ML, T))
        a('v_exp_f32 v%d, v%d' % (W, W))
        for k in range(4):
            a('v_and_b32 v%d, 0xffff0000, v%d' % (U + 2 * k + 1, X + k))
        a('v_mul_f32 v%d, v%d, v%d' % (T, W, ML + 1))
        a('v_mov_b32 v%d, v%d' % (T + 1, T))
        a('v_permlane32_swap_b32 v%d, v%d' % (T, T + 1))
        a('v_add_f32 v%d, v%d, v%d' % (T, T, T + 1))
        a('v_rcp_f32 v%d, v%d' % (T, T))
        a('v_mul_f32 v%d, v%d, v%d' % (W, W, T))
        for k in range(8):
            a('v_mul_f32 v%d, v%d, v%d' % (U + k, U + k, W))
        for k in range(4):
            a('v_permlane32_swap_b32 v%d, v%d' % (U + k, U + 4 + k))
        for k in range(4):
            a('v_add_f32 v%d, v%d, v%d' % (U + k, U + k, U + 4 + k))
        a('v_cvt_pk_bf16_f32 v%d, v%d, v%d' % (U, U, U + 1))
        a('v_cvt_pk_bf16_f32 v%d, v%d, v%d' % (U + 1, U + 2, U + 3))
        a('ds_write_b64 v%d, v[%d:%d]' % (VCW, U, U + 1))
        self.sync(T, T + 1, 4)
        AC = X + 8
        for ks in range(8):
            a('ds_read_b128 %s, v%d offset:%d' % (vr(FO + 4 * ks, 4), VCR, ks * 64))
        a('v_mov_b32 v%d, s%d' % (X + 2, S_NA))
        a('v_mov_b32 v%d, s%d' % (X + 3, S_NA + 1))
        for ks in range(8):
            a('s_waitcnt lgkmcnt(%d)' % (7 - ks))
            for tt in range(2):
                a('v_mfma_f32_16x16x32_bf16 %s, %s, %s, %s' % (
                    vr(AC + 4 * tt, 4), vr(FU + 8 * ks + 4 * tt, 4), vr(FO + 4 * ks, 4),
                    '0' if ks == 0 else vr(AC + 4 * tt, 4)))
        for tt in range(2):
            a('v_cvt_pk_bf16_f32 v%d, v%d, v%d' % (X + 4 * tt, AC + 4 * tt, AC + 4 * tt + 1))
            a('v_cvt_pk_bf16_f32 v%d, v%d, v%d' % (X + 4 * tt + 1, AC + 4 * tt + 2, AC + 4 * tt + 3))
        for k in range(2):
            a('v_mov_b32_dpp v%d, v%d %s row_mask:0xf bank_mask:0x2' % (X + k, X + 4 + k, DPP_ID))
        a('s_mov_b64 exec, %s' % sp(S_MK))
        self.st2(['buffer_store_dwordx4 %s, v%d, %s, 0 offen' % (vr(X, 4), VY, srd(SRD_WS))])
        a('s_mov_b64 exec, -1')
        self.stamp(13)
        self.end_red()

    def b_att(self):
        a, o = self.a, self.o
        a.label('L_BATT')
        sBi, sKt, sHh, sOff, sC, sX, sThr, sSl, sSl2, sI, sAll, sE = [S_T + i for i in range(12)]
        Q, ACC, T = 32, 128, 160
        VA, VTM, VP, VPB, VAL, VQ = 4, 5, 6, 7, 8, 0
        VTR, MRUN, S4 = 9, 13, 16
        AD = ACC + 16
        sTb = S_T + 12
        self.b_index(sBi)
        a('s_lshr_b32 s%d, s%d, 1' % (sKt, S_CW))
        a('s_and_b32 s%d, s%d, 1' % (sHh, S_CW))
        a('s_mov_b32 s%d, 0x%x' % (sC, f32bits(SCALE_LOG2E)))
        a('v_lshlrev_b32 v%d, 10, v3' % VA)
        a('v_lshl_add_u32 v%d, v2, 8, v%d' % (VA, VA))
        a('v_lshl_add_u32 v%d, v3, 4, v%d' % (VQ, VA))
        a('s_lshl_b32 s7, s%d, 14' % sHh)
        a('s_add_u32 s7, s7, 0x%x' % QST)
        a('v_add_u32 v%d, s7, v%d' % (VQ, VQ))
        a('v_and_b32 v%d, 3, v1' % (T + 2))
        a('v_lshl_add_u32 v%d, v%d, 6, v%d' % (VA, T + 2, VA))
        a('v_bfe_u32 v%d, v1, 2, 2' % (T + 2))
        a('v_lshl_add_u32 v%d, v%d, 4, v%d' % (VA, T + 2, VA))
        a('s_lshl_b32 s7, s%d, 7' % S_CW)
        a('s_add_u32 s7, s7, 0x%x' % TML)
        a('v_lshl_add_u32 v%d, v3, 3, s7' % VTM)
        a('s_lshl_b32 s7, s%d, 10' % sKt)
        a('s_lshl_b32 s%d, s%d, 8' % (sOff, sHh))
        a('s_add_u32 s7, s7, s%d' % sOff)
        a('s_add_u32 s7, s7, 0x%x' % PBUF)
        a('v_lshl_add_u32 v%d, v3, 4, s7' % VP)
        a('v_lshrrev_b32 v%d, 5, v1' % (T + 3))
        a('v_lshl_add_u32 v%d, v%d, 9, v%d' % (VP, T + 3, VP))
        a('v_and_b32 v%d, 1, v2' % (T + 2))
        a('v_lshl_add_u32 v%d, v%d, 3, v%d' % (VP, T + 2, VP))
        a('v_lshlrev_b32 v%d, 4, v1' % VPB)
        a('v_add_u32 v%d, 0x%x, v%d' % (VPB, PBUF, VPB))
        a('v_and_b32 v%d, 31, v1' % (T + 2))
        a('v_lshlrev_b32 v%d, 3, v%d' % (VAL, T + 2))
        a('v_add_u32 v%d, 0x%x, v%d' % (VAL, TML, VAL))
        a('v_bfe_u32 v%d, v1, 2, 2' % (T + 2))
        a('v_lshl_add_u32 v%d, v%d, 3, v%d' % (T + 4, T + 3, T + 2))
        a('v_lshlrev_b32 v%d, 10, v%d' % (T + 4, T + 4))
        a('v_and_b32 v%d, 1, v1' % (T + 5))
        a('v_lshl_add_u32 v%d, v%d, 3, v%d' % (T + 4, T + 5, T + 4))
        a('s_lshl_b32 s7, s%d, 8' % sKt)
        a('v_add_u32 v%d, s7, v%d' % (T + 4, T + 4))
        a('v_bfe_u32 v%d, v1, 4, 1' % (T + 5))
        a('v_lshlrev_b32 v%d, 1, v%d' % (T + 5, T + 5))
        a('v_bfe_u32 v%d, v1, 1, 1' % T)
        a('v_or_b32 v%d, v%d, v%d' % (T + 5, T + 5, T))
        a('s_lshl_b32 s7, s%d, 3' % sHh)
        a('v_or_b32 v%d, s7, v%d' % (T + 5, T + 5))
        a('v_lshlrev_b32 v%d, 2, v%d' % (T + 2, T + 2))
        a('v_xor_b32 v%d, v%d, v%d' % (T + 5, T + 5, T + 2))
        a('v_lshlrev_b32 v%d, 1, v%d' % (T + 3, T + 3))
        a('v_xor_b32 v%d, v%d, v%d' % (T + 5, T + 5, T + 3))
        for hf in range(2):
            for ct in range(2):
                a('v_xor_b32 v%d, %d, v%d' % (T, (4 * ct) ^ hf, T + 5))
                a('v_lshl_add_u32 v%d, v%d, 4, v%d' % (VTR + 2 * hf + ct, T, T + 4))
                if hf:
                    a('v_add_u32 v%d, 0x1000, v%d' % (VTR + 2 * hf + ct, VTR + 2 * hf + ct))
        a('v_mov_b32 v%d, 0xff800000' % MRUN)
        a('s_mov_b64 %s, 0xffff' % sp(S_MK))
        a('s_lshl_b32 s7, s%d, 15' % sBi)
        a('s_lshl_b32 s%d, s%d, 12' % (sOff, S_CW))
        a('s_add_u32 s7, s7, s%d' % sOff)
        a('s_add_u32 s7, s7, 0x%x' % WS_C1)
        if o.yst & 2:
            a('s_and_b32 s%d, s%d, 3' % (sX, sBi))
            a('s_lshl3_add_u32 s%d, s%d, s%d' % (sX, sX, S_CW))
            a('s_lshl_b32 s%d, s%d, 4' % (sX, sX))
            a('s_lshr_b32 s%d, s%d, 2' % (sThr, sBi))
            a('s_add_u32 s%d, s%d, s%d' % (sX, sX, sThr))
            a('s_lshl_b32 s%d, s%d, 8' % (sX, sX))
            a('s_add_u32 s%d, s%d, 0x%x' % (sX, sX, WS_YB))
            a('v_lshl_add_u32 v%d, v1, 4, s%d' % (AD + 8, sX))
            a('s_mov_b64 exec, 0xffff')
            a('buffer_store_dwordx4 v[0:3], v%d, %s, 0 offen sc1' % (AD + 8, srd(SRD_WS)))
            a('s_mov_b64 exec, -1')
        a('v_lshl_add_u32 v%d, v1, 4, s7' % (AD + 8))
        for q in range(4 if o.c1w in (0, 2) else 0):
            a('buffer_store_dwordx4 v[0:3], v%d, %s, 0 offen offset:%d%s' % (
                AD + 8, srd(SRD_WS), q * 1024, ' sc1' if o.c1w else ''))
        a('s_lshl_b32 s7, s%d, 9' % S_CW)
        a('s_add_u32 s7, s7, 0x%x' % WS_FLAG)
        a('v_and_b32 v%d, 1, v1' % AD)
        a('v_lshl_add_u32 v%d, v%d, 3, s7' % (AD, AD))
        a('v_lshrrev_b32 v%d, 1, v1' % (AD + 1))
        a('v_lshl_add_u32 v%d, v%d, 7, v%d' % (AD, AD + 1, AD))
        a('s_lshr_b32 s7, s%d, 4' % sBi)
        a('s_lshl_b32 s7, s7, 15')
        a('s_add_u32 s7, s7, s%d' % sOff)
        a('v_lshl_add_u32 v%d, v1, 4, s7' % (AD + 1))
        a('s_and_b32 s7, s%d, 3' % S_CW)
        a('s_lshl_b32 s7, s7, 6')
        a('v_lshlrev_b32 v%d, 4, v1' % (AD + 2))
        a('v_xor_b32 v%d, s7, v%d' % (AD + 2, AD + 2))
        a('s_add_u32 s7, s%d, 0x%x' % (sOff, QST))
        a('v_add_u32 v%d, s7, v%d' % (AD + 2, AD + 2))
        for i in range(1, 4):
            a('v_xor_b32 v%d, 0x%x, v%d' % (AD + 2 + i, i << 4, AD + 2))
        SB = 96

        def ss(k):
            if not o.bprof:
                self.stampd(sI, -3, 28 + k)

        def fs(k):
            if o.bprof:
                self.stampd(sI, 40, 16 + k - 40 * o.bprof)

        def caddr(kk):
            a('s_bfe_u32 s7, s%d, 0x%x' % (sTb, 0x40000 | (4 * kk)))
            a('s_lshl_b32 s7, s7, 14')
            for v in range(4):
                a('v_add_u32 v%d, s7, v%d' % (20 + 4 * (kk % 3) + v, VTR + v))

        def cread(kk):
            for ct in range(2):
                c = SB + 8 * kk + 4 * ct
                a('ds_read_b64_tr_b16 v[%d:%d], v%d' % (c, c + 1, 20 + 4 * (kk % 3) + ct))
                a('ds_read_b64_tr_b16 v[%d:%d], v%d' % (c + 2, c + 3, 20 + 4 * (kk % 3) + 2 + ct))
        a('s_lshl_b32 s%d, s%d, 4' % (sThr, sKt))
        a('s_add_u32 s%d, s%d, %d' % (sThr, sThr, PWB + 16))
        a('s_mov_b32 s%d, %d' % (sAll, PWB + 64))
        a('s_mov_b32 s%d, 0x800080' % sE)
        a('s_lshl_b32 s%d, s%d, 2' % (sSl, sKt))
        a('s_or_b32 s%d, s%d, 0x40000' % (sSl, sSl))
        a('s_mov_b32 s%d, 0x%x' % (sTb, TSLOTS & 0xffffffff))
        a('s_mov_b32 s%d, 0x%x' % (sTb + 1, TSLOTS >> 32))
        a('s_mov_b32 s%d, 4' % sI)
        a('s_lshr_b32 s7, s%d, 3' % sBi)
        a('s_lshl_b32 s7, s7, 7')
        a('s_add_u32 s7, s7, 0x%x' % WS_XF)
        a('v_lshl_add_u32 v%d, v1, 3, s7' % (AD + 9))
        self.lds_wait(LAND, o.fs, T, T + 1, sleep=2)

        def preread():
            a('buffer_load_dwordx2 v[18:19], v%d, %s, 0 offen sc1 nt' % (AD + 9, srd(SRD_WS)))
            a('s_mov_b64 exec, -1')
            a('s_lshl_b32 s7, s%d, 14' % sKt)
            a('v_add_u32 v14, s7, v%d' % VA)
            self.lds_wait(LAND, PWB + 64, T, T + 1, sleep=2)
            for ks in range(16):
                a('v_xor_b32 v%d, 0x%x, v14' % (T + (ks & 1), ks << 4))
                a('ds_read_b128 %s, v%d' % (vr(Q + 4 * ks, 4), T + (ks & 1)))
            for kk in range(4):
                caddr(kk)
                cread(kk)
            self.lds_add(FREE, T + 2, T + 3, drain=False)
            self.stamp(6)
            self.get_nonce('a', T)
        self.mpoll(1, lambda i: a('buffer_load_dwordx2 v[16:17], v%d, %s, 0 offen sc1' % (AD, srd(SRD_WS))),
                   lambda i: 16, 44, 2, base='0xff', first=preread)
        self.local(AD + 9, 18, '0xff', 4, 8, issued=True)
        LXC = a.uniq('XC')
        a('s_cmp_ge_u32 s%d, 4' % S_CW)
        a('s_cbranch_scc1 %s' % LXC)
        a('s_and_b32 s7, s%d, 7' % sBi)
        a('s_lshl_b32 s7, s7, 2')
        a('s_add_u32 s7, s7, s%d' % S_CW)
        a('s_lshl_b32 s7, s7, 3')
        a('s_lshr_b32 s%d, s%d, 3' % (sX, sBi))
        a('s_add_u32 s7, s7, s%d' % sX)
        a('s_lshl_b32 s7, s7, 7')
        a('s_add_u32 s7, s7, 0x%x' % (WS_ML2 + 16))
        a('v_mov_b32 v%d, s7' % T)
        a('s_waitcnt vmcnt(0)')
        a('s_mov_b64 exec, 1')
        a('buffer_store_dwordx2 v[%d:%d], v%d, %s, 0 offen sc1' % (T + 2, T + 3, T, srd(SRD_WS)))
        a('s_mov_b64 exec, -1')
        a.label(LXC)
        self.lds_wait(LAND, o.qs, T, T + 1, sleep=1)
        self.stamp(7)

        def qbad(i, m):
            q = ACC + 4 * i
            a('v_max3_u32 v%d, v%d, v%d, v%d' % (T + i, q, q + 1, q + 2))
            a('v_max_u32 v%d, v%d, v%d' % (T + i, T + i, q + 3))
            a('v_cmp_eq_u32 %s, -1, v%d' % (sp(m), T + i))
        self.mpoll(4, lambda i: a('buffer_load_dwordx4 %s, v%d, %s, 0 offen offset:%d sc1' % (
            vr(ACC + 4 * i, 4), AD + 1, srd(SRD_WS), i * 1024)), None, 44, o.qsl, bad=qbad)
        if o.n0 < 11:
            self.lds_add(FREE + 8, T, T + 1, drain=False)
        for i in range(4):
            a('ds_write_b128 v%d, %s offset:%d' % (AD + 2 + i, vr(ACC + 4 * i, 4), i * 1024))
        for n in range(8):
            a('v_xor_b32 v%d, 0x%x, v%d' % (20 + n, n << 4, VQ))
        a('v_mov_b32 v%d, 0x%x' % (VQ, LAND))
        self.sync(T + 2, T + 3)
        self.stamp(8)
        for n in range(8):
            a('ds_read_b128 %s, v%d' % (vr(ACC + 4 * n, 4), 20 + n))
        for n in range(8):
            a('v_xor_b32 v%d, 0x80, v%d' % (20 + n, 20 + n))
        for ks in range(16):
            b = ACC + 4 * (ks & 7)
            a('s_waitcnt lgkmcnt(%d)' % min(7, 15 - ks))
            a('v_mfma_f32_16x16x32_bf16 %s, %s, %s, %s' % (
                vr(S4, 4), vr(Q + 4 * ks, 4), vr(b, 4), '0' if ks == 0 else vr(S4, 4)))
            for k in range(0, 4, 2):
                a('v_pk_mov_b32 v[%d:%d], v[%d:%d], v[%d:%d] op_sel:[0,1]' % (
                    Q + 4 * ks + k, Q + 4 * ks + k + 1, b + k, b + k + 1, b + k, b + k + 1))
            if ks < 8:
                a('ds_read_b128 %s, v%d' % (vr(b, 4), 20 + ks))
            else:
                for k in range(0, 4, 2):
                    a('v_pk_mov_b32 v[%d:%d], 0, 0' % (b + k, b + k + 1))
        self.lds_add(FREE + 4, T + 2, T + 3, drain=False)
        LM = a.uniq('BM')
        a('s_branch %s' % LM)
        LS = a.uniq('BS')
        a.label(LS)
        a('s_bfe_u32 s7, s%d, s%d' % (sTb, sSl))
        a('s_lshl_b32 s7, s7, 14')
        a('v_add_u32 v20, s7, v%d' % VA)
        for n in range(1, 8):
            a('v_xor_b32 v%d, 0x%x, v20' % (20 + n, n << 4))
        LK = a.uniq('BK')
        a('v_readfirstlane_b32 s%d, v15' % S_X)
        a('s_cmp_ge_u32 s%d, s%d' % (S_X, sThr))
        a('s_cbranch_scc1 %s' % LK)
        self.lds_wait(LAND, 's%d' % sThr, T + 2, T + 3, sleep=1)
        a.label(LK)
        ss(0)
        fs(0)
        for n in range(8):
            a('ds_read_b128 %s, v%d' % (vr(SB + 4 * n, 4), 20 + n))
        for n in range(8):
            a('v_xor_b32 v%d, 0x80, v%d' % (20 + n, 20 + n))
        for ks in range(16):
            a('s_waitcnt lgkmcnt(%d)' % min(7, 15 - ks))
            a('v_mfma_f32_16x16x32_bf16 %s, %s, %s, %s' % (
                vr(S4, 4), vr(SB + 4 * (ks & 7), 4), vr(Q + 4 * ks, 4), '0' if ks == 0 else vr(S4, 4)))
            if ks < 8:
                a('ds_read_b128 %s, v%d' % (vr(SB + 4 * ks, 4), 20 + ks))
            if ks in (9, 11, 13):
                caddr((ks - 9) // 2)
        LA = a.uniq('BA')
        a('s_cmp_ge_u32 s%d, s%d' % (S_X, sAll))
        a('s_cbranch_scc1 %s' % LA)
        self.lds_wait(LAND, 's%d' % sAll, T + 2, T + 3, sleep=1)
        a.label(LA)
        for kk in range(3):
            cread(kk)
        caddr(3)
        cread(3)
        self.lds_add(FREE, T + 2, T + 3, drain=False)
        a.label(LM)
        fs(1)
        a('v_max3_f32 v%d, v%d, v%d, v%d' % (T, S4, S4 + 1, S4 + 2))
        a('v_max_f32 v%d, v%d, v%d' % (T, T, S4 + 3))
        self.xlane_rows('v_max_f32', [T], T + 1)
        a('v_mul_f32 v%d, s%d, v%d' % (T, sC, T))
        a('v_ceil_f32 v%d, v%d' % (T, T))
        for k in range(4):
            a('v_fma_f32 v%d, v%d, s%d, -v%d' % (S4 + k, S4 + k, sC, T))
        for k in range(4):
            a('v_exp_f32 v%d, v%d' % (S4 + k, S4 + k))
        for k in range(2):
            a('v_cvt_pk_bf16_f32 v%d, v%d, v%d' % (T + 2 + k, S4 + 2 * k, S4 + 2 * k + 1))
        a('ds_write_b64 v%d, v[%d:%d]' % (VP, T + 2, T + 3))
        a('s_mov_b64 exec, %s' % sp(S_MK))
        a('ds_write_b32 v%d, v%d' % (VTM, T))
        a('s_add_u32 s%d, s%d, 8' % (S_SY, S_SY))
        self.lds_add(C_SY, T + 4, T + 5, drain=False)
        a('v_add_f32 v%d, v%d, v%d' % (S4, S4, S4 + 1))
        a('v_add_f32 v%d, v%d, v%d' % (S4 + 2, S4 + 2, S4 + 3))
        a('v_add_f32 v%d, v%d, v%d' % (T + 1, S4, S4 + 2))
        self.xlane_rows('v_add_f32', [T + 1], S4)
        a('s_mov_b64 exec, %s' % sp(S_MK))
        a('ds_write_b32 v%d, v%d offset:4' % (VTM, T + 1))
        a('s_mov_b64 exec, 1')
        a('ds_add_u32 v%d, v%d offset:%d' % (T + 4, T + 5, C_MX - C_SY))
        a('s_mov_b64 exec, -1')
        fs(2)
        self.lds_wait(C_SY, 's%d' % S_SY, T + 4, T + 5, sleep=0)
        ss(1)
        fs(3)
        PB = 16
        for kk in range(4):
            a('ds_read_b32 v%d, v%d offset:%d' % (T + kk, VAL, kk * 256))
        a('ds_read_b32 v15, v%d' % VQ)
        for kk in range(4):
            a('ds_read_b128 %s, v%d offset:%d' % (vr(PB + 4 * kk, 4), VPB, kk * 1024))
        a('v_xor_b32 v%d, 0x%x, v%d' % (VP, PBUF ^ (PBUF + 4096), VP))
        a('v_xor_b32 v%d, 0x%x, v%d' % (VPB, PBUF ^ (PBUF + 4096), VPB))
        a('v_add_u32 v%d, 1024, v%d' % (VTM, VTM))
        a('v_add_u32 v%d, 1024, v%d' % (VAL, VAL))
        a('s_waitcnt lgkmcnt(5)')
        a('v_max3_f32 v14, v%d, v%d, v%d' % (MRUN, T, T + 1))
        a('v_max3_f32 v14, v14, v%d, v%d' % (T + 2, T + 3))
        a('v_cmp_neq_f32 vcc, v14, v%d' % MRUN)
        for kk in range(4):
            a('v_sub_f32 v%d, v14, v%d' % (T + kk, T + kk))
        for kk in range(4):
            a('v_cvt_u32_f32 v%d, v%d' % (T + kk, T + kk))
        for kk in range(4):
            a('v_min_u32 v%d, 0xff, v%d' % (T + kk, T + kk))
        for kk in range(4):
            a('v_mul_u32_u24 v%d, s%d, v%d' % (T + kk, sE, T + kk))
        LR = a.uniq('BR')
        a('s_cbranch_vccz %s' % LR)
        a('v_sub_f32 v%d, v%d, v14' % (T + 4, MRUN))
        a('v_exp_f32 v%d, v%d' % (T + 4, T + 4))
        a('v_mov_b32 v%d, v14' % MRUN)
        for k in range(0, 32, 2):
            a('v_pk_mul_f32 v[%d:%d], v[%d:%d], v[%d:%d] op_sel_hi:[1,0]' % (
                ACC + k, ACC + k + 1, ACC + k, ACC + k + 1, T + 4, T + 5))
        a.label(LR)
        fs(4)
        for kk in range(4):
            a('s_waitcnt lgkmcnt(%d)' % (3 - kk))
            for k in range(4):
                a('v_pk_sub_u16 v%d, v%d, v%d clamp' % (PB + 4 * kk + k, PB + 4 * kk + k, T + kk))
            for ct in range(2):
                a('v_mfma_f32_32x32x16_bf16 %s, %s, %s, %s' % (
                    vr(ACC + 16 * ct, 16), vr(SB + 8 * kk + 4 * ct, 4), vr(PB + 4 * kk, 4), vr(ACC + 16 * ct, 16)))
        ss(2)
        fs(5)
        a('s_lshr_b64 %s, %s, 16' % (sp(sTb), sp(sTb)))
        a('s_add_u32 s%d, s%d, 64' % (sThr, sThr))
        a('s_add_u32 s%d, s%d, 64' % (sAll, sAll))
        a('s_sub_u32 s%d, s%d, 1' % (sI, sI))
        a('s_cmp_lg_u32 s%d, 0' % sI)
        a('s_cbranch_scc1 %s' % LS)
        sXg, sIdx = sSl, sSl2
        a('s_lshr_b32 s%d, s%d, 3' % (sXg, sBi))
        a('s_and_b32 s%d, s%d, 7' % (sIdx, sBi))
        a('s_lshl_b32 s7, s%d, 15' % sBi)
        a('s_lshl_b32 s%d, s%d, 12' % (sOff, S_CW))
        a('s_add_u32 s7, s7, s%d' % sOff)
        a('s_add_u32 s7, s7, 0x%x' % WS_C1)
        a('v_lshl_add_u32 v5, v1, 4, s7')
        a('v_mov_b32 v38, s%d' % S_NA)
        a('v_mov_b32 v39, s%d' % (S_NA + 1))
        L7 = a.uniq('B7')
        a('s_cmp_lg_u32 s%d, 7' % S_CW)
        a('s_cbranch_scc1 %s' % L7)
        a('v_lshrrev_b32 v45, 5, v1')
        a('v_lshl_add_u32 v45, v45, 11, v%d' % VAL)
        a('v_add_u32 v45, -4096, v45')
        self.lds_wait(C_MX, 32, 46, 47, sleep=0)
        for i in range(8):
            a('ds_read_b64 v[%d:%d], v45 offset:%d' % (48 + 2 * i, 49 + 2 * i, i * 256))
        a('s_lshl_b32 s7, s%d, 9' % sBi)
        a('s_add_u32 s7, s7, 0x%x' % WS_ML1)
        a('v_lshl_add_u32 v44, v1, 4, s7')
        a('v_mov_b32 v36, v%d' % MRUN)
        a('s_waitcnt lgkmcnt(0)')
        for i in range(8):
            a('v_sub_f32 v%d, v%d, v36' % (48 + 2 * i, 48 + 2 * i))
        for i in range(8):
            a('v_exp_f32 v%d, v%d' % (48 + 2 * i, 48 + 2 * i))
        a('v_mul_f32 v37, v48, v49')
        for i in range(1, 8):
            a('v_fmac_f32 v37, v%d, v%d' % (48 + 2 * i, 49 + 2 * i))
        a('v_mov_b32 v48, v37')
        a('v_permlane32_swap_b32 v37, v48')
        a('v_add_f32 v37, v37, v48')
        a('s_mov_b64 exec, 0xffffffff')
        self.st2(['buffer_store_dwordx4 v[36:39], v44, %s, 0 offen' % srd(SRD_WS)])
        a('s_mov_b64 exec, -1')
        a.label(L7)
        self.stamp(9)
        for ct in range(2):
            for k in range(2):
                r0, r1 = ACC + 16 * ct + 8 * k, ACC + 16 * ct + 8 * k + 4
                for e in range(4):
                    a('v_permlane32_swap_b32 v%d, v%d' % (r0 + e, r1 + e))
                d = 16 + 4 * (2 * ct + k)
                a('v_cvt_pk_bf16_f32 v%d, v%d, v%d' % (d, r0, r0 + 1))
                a('v_cvt_pk_bf16_f32 v%d, v%d, v%d' % (d + 1, r0 + 2, r0 + 3))
                a('v_cvt_pk_bf16_f32 v%d, v%d, v%d' % (d + 2, r1, r1 + 1))
                a('v_cvt_pk_bf16_f32 v%d, v%d, v%d' % (d + 3, r1 + 2, r1 + 3))
        a('s_lshl_b32 s7, s%d, 9' % sXg)
        a('s_lshl_b32 s%d, s%d, 6' % (sX, S_CW))
        a('s_add_u32 s7, s7, s%d' % sX)
        a('s_add_u32 s7, s7, 0x%x' % WS_F1)
        a('v_and_b32 v%d, 7, v1' % T)
        a('v_lshl_add_u32 v7, v%d, 3, s7' % T)
        a('s_lshl_b64 %s, 1, s%d' % (sp(S_MK3), sIdx))
        c1s = ['buffer_store_dwordx4 %s, v5, %s, 0 offen offset:%d' % (vr(16 + 4 * q, 4), srd(SRD_WS), q * 1024)
               for q in range(4)]
        if o.c1w in (1, 2):
            for x in c1s:
                a(x + ' sc1')
            c1s = []
        self.st2(c1s +
                 ['s_waitcnt vmcnt(0)', 's_mov_b64 exec, %s' % sp(S_MK3),
                  'buffer_store_dwordx2 v[38:39], v7, %s, 0 offen' % srd(SRD_WS), 's_mov_b64 exec, -1'])
        self.stamp(10)
        X1, ML, W, U = 48, 64, 80, 88
        a('s_lshl_b32 s7, s%d, 18' % sXg)
        a('s_add_u32 s7, s7, s%d' % sOff)
        a('s_lshl_b32 s%d, s%d, 6' % (sX, sIdx))
        a('s_add_u32 s7, s7, s%d' % sX)
        a('s_add_u32 s7, s7, 0x%x' % WS_C1)
        a('v_and_b32 v%d, 3, v1' % T)
        a('v_lshl_add_u32 v5, v%d, 4, s7' % T)
        a('v_bfe_u32 v%d, v1, 2, 3' % (T + 1))
        a('v_lshl_add_u32 v5, v%d, 9, v5' % (T + 1))
        a('v_lshrrev_b32 v%d, 5, v1' % (T + 2))
        a('v_lshl_add_u32 v5, v%d, 15, v5' % (T + 2))
        a('s_lshl_b32 s7, s%d, 12' % sXg)
        a('s_add_u32 s7, s7, s%d' % sX)
        a('s_add_u32 s7, s7, 0x%x' % WS_ML1)
        a('v_lshl_add_u32 v6, v%d, 4, s7' % T)
        a('v_lshl_add_u32 v6, v%d, 9, v6' % (T + 2))
        a('s_lshl_b32 s7, s%d, 15' % sIdx)
        a('s_lshl_b32 s%d, s%d, 10' % (sOff, sXg))
        a('s_add_u32 s7, s7, s%d' % sOff)
        a('s_lshl_b32 s%d, s%d, 7' % (sOff, S_CW))
        a('s_add_u32 s7, s7, s%d' % sOff)
        a('s_add_u32 s7, s7, 0x%x' % WS_CT2)
        a('v_lshl_add_u32 v8, v%d, 13, s7' % T)
        a('v_lshl_add_u32 v8, v%d, 4, v8' % (T + 1))
        a('v_lshl_add_u32 v8, v%d, 3, v8' % (T + 2))
        a('s_lshl_b32 s7, s%d, 7' % sXg)
        a('s_lshl_b32 s%d, s%d, 12' % (sOff, sIdx))
        a('s_add_u32 s7, s7, s%d' % sOff)
        a('s_add_u32 s7, s7, 0x%x' % WS_ML2)
        a('v_lshl_add_u32 v9, v%d, 10, s7' % T)

        self.mpoll(1, lambda i: a('buffer_load_dwordx2 v[40:41], v7, %s, 0 offen sc1 nt' % srd(SRD_WS)),
                   lambda i: 40, S_MK2, 0, base='0xff')

        def mll():
            for i in range(4):
                a('buffer_load_dwordx4 %s, v6, %s, 0 offen offset:%d sc1 nt' % (vr(ML + 4 * i, 4), srd(SRD_WS), i * 1024))
        mll()
        a('s_mov_b32 s%d, 0' % sOff)
        for i in range(4):
            a('buffer_load_dwordx4 %s, v5, %s, s%d offen sc1%s' % (vr(X1 + 4 * i, 4), srd(SRD_WS), sOff, '' if o.c1w else ' nt'))
            a('s_add_u32 s%d, s%d, 65536' % (sOff, sOff))
        LM, LMD = a.uniq('BL'), a.uniq('BLD')
        a('s_waitcnt vmcnt(4)')
        self.tags_bad(range(ML + 2, ML + 16, 4), S_NA)
        a('s_cbranch_scc1 %s' % LM)
        a.label(LMD)

        def mlretry():
            a.label(LM)
            self.poll(mll, lambda: self.tags_bad(range(ML + 2, ML + 16, 4), S_NA), 0)
            a('s_branch %s' % LMD)
        self.tail.append(mlretry)
        self.stamp(2)
        a('v_max3_f32 v36, v%d, v%d, v%d' % (ML, ML + 4, ML + 8))
        a('v_max_f32 v36, v36, v%d' % (ML + 12))
        a('v_mov_b32 v37, v36')
        a('v_permlane32_swap_b32 v36, v37')
        a('v_max_f32 v36, v36, v37')
        for i in range(4):
            a('v_sub_f32 v%d, v%d, v36' % (W + i, ML + 4 * i))
        for i in range(4):
            a('v_exp_f32 v%d, v%d' % (W + i, W + i))
        a('v_mul_f32 v37, v%d, v%d' % (W, ML + 1))
        for i in range(1, 4):
            a('v_fmac_f32 v37, v%d, v%d' % (W + i, ML + 4 * i + 1))
        a('v_mov_b32 v40, v37')
        a('v_permlane32_swap_b32 v37, v40')
        a('v_add_f32 v37, v37, v40')
        AC = 16
        for i in range(4):
            a('s_waitcnt vmcnt(%d)' % (3 - i))
            if i == 3:
                self.lds_add(C_L2, T, T + 1, drain=False)
            for k in range(4):
                a('v_lshlrev_b32 v%d, 16, v%d' % (U + 2 * k, X1 + 4 * i + k))
                a('v_and_b32 v%d, 0xffff0000, v%d' % (U + 2 * k + 1, X1 + 4 * i + k))
            for k in range(8):
                a('%s v%d, v%d, v%d' % ('v_mul_f32' if i == 0 else 'v_fmac_f32', AC + k, U + k, W + i))
        for k in range(4):
            a('v_permlane32_swap_b32 v%d, v%d' % (AC + k, AC + 4 + k))
        for k in range(4):
            a('v_add_f32 v%d, v%d, v%d' % (AC + k, AC + k, AC + 4 + k))
        a('v_cvt_pk_bf16_f32 v44, v%d, v%d' % (AC, AC + 1))
        a('v_cvt_pk_bf16_f32 v45, v%d, v%d' % (AC + 2, AC + 3))
        self.lds_wait(C_L2, 8, T, T + 1, sleep=0)
        a('buffer_store_dwordx2 v[44:45], v8, %s, 0 offen sc1' % srd(SRD_WS))
        L1 = a.uniq('BM2')
        a('s_cmp_lg_u32 s%d, 0' % S_CW)
        a('s_cbranch_scc1 %s' % L1)
        a('s_mov_b64 exec, 15')
        a('buffer_store_dwordx4 v[36:39], v9, %s, 0 offen sc1' % srd(SRD_WS))
        a('s_mov_b64 exec, -1')
        a.label(L1)
        self.lds_add(C_L2, T, T + 1, drain=False)
        self.stamp(11)
        FO, OP, G = 48, 80, 16
        CDB = PBUF
        a('s_lshr_b32 s%d, s%d, 2' % (sX, sBi))
        a('s_lshl_b32 s7, s%d, 13' % sX)
        a('s_lshl_b32 s%d, s%d, 10' % (sOff, S_CW))
        a('s_add_u32 s7, s7, s%d' % sOff)
        a('s_add_u32 s7, s7, 0x%x' % WS_CD)
        a('v_lshl_add_u32 v4, v1, 4, s7')
        a('v_lshrrev_b32 v%d, 2, v3' % T)
        a('v_mul_u32_u24 v5, 576, v%d' % T)
        a('v_and_b32 v%d, 3, v1' % T)
        a('v_lshl_add_u32 v5, v%d, 4, v5' % T)
        a('v_lshrrev_b32 v%d, 5, v1' % (T + 1))
        a('v_lshl_add_u32 v5, v%d, 6, v5' % (T + 1))
        a('v_and_b32 v%d, 1, v2' % (T + 1))
        a('v_lshl_add_u32 v5, v%d, 3, v5' % (T + 1))
        a('s_and_b32 s7, s%d, 2' % S_CW)
        a('s_mul_i32 s7, s7, 1152')
        a('s_and_b32 s%d, s%d, 4' % (sOff, S_CW))
        a('s_lshl_b32 s%d, s%d, 6' % (sOff, sOff))
        a('s_add_u32 s7, s7, s%d' % sOff)
        a('s_lshl_b32 s%d, s%d, 7' % (sOff, sHh))
        a('s_add_u32 s7, s7, s%d' % sOff)
        a('s_add_u32 s7, s7, 0x%x' % CDB)
        a('v_add_u32 v5, s7, v5')
        a('v_and_b32 v6, 7, v1')
        a('v_mul_u32_u24 v6, 576, v6')
        a('v_lshl_add_u32 v6, v2, 4, v6')
        a('v_add_u32 v6, 0x%x, v6' % CDB)
        a('s_and_b32 s7, s%d, 3' % sIdx)
        a('s_lshl_b32 s7, s7, 3')
        a('s_add_u32 s7, s7, s%d' % S_CW)
        a('s_lshl_b32 s7, s7, 4')
        a('s_add_u32 s7, s7, s%d' % sX)
        a('s_lshl_b32 s7, s7, 8')
        a('s_add_u32 s7, s7, 0x%x' % WS_YB)
        a('v_lshl_add_u32 v7, v%d, 6, s7' % T)
        a('v_lshl_add_u32 v7, v2, 4, v7')
        a('v_cmp_gt_u32 %s, 4, v3' % sp(S_MK))
        a('v_bfe_u32 v8, v1, 2, 3')
        a('v_xor_b32 v8, s%d, v8' % S_CW)
        a('v_lshlrev_b32 v8, 5, v8')
        a('v_lshrrev_b32 v%d, 2, v1' % (T + 1))
        a('v_lshl_add_u32 v8, v%d, 8, v8' % (T + 1))
        a('v_lshl_add_u32 v8, v%d, 3, v8' % T)
        self.lds_wait(LAND, PWB + 256 + 64, T + 2, T + 3, sleep=1)
        for ks in range(8):
            a('ds_read_b64_tr_b16 v[%d:%d], v8 offset:%d' % (FO + 4 * ks, FO + 4 * ks + 1, ks * 8192))
            a('ds_read_b64_tr_b16 v[%d:%d], v8 offset:%d' % (FO + 4 * ks + 2, FO + 4 * ks + 3, ks * 8192 + 4096))
        self.stamp(12)
        self.mpoll(1, lambda i: a('buffer_load_dwordx4 %s, v4, %s, 0 offen sc1 nt' % (vr(G, 4), srd(SRD_WS))),
                   lambda i: G + 2, S_MK2, 1)
        a('ds_write_b64 v5, v[%d:%d]' % (G, G + 1))
        self.stamp(13)
        self.sync(T, T + 1)
        for ks in range(8):
            a('ds_read_b128 %s, v6 offset:%d' % (vr(OP + 4 * ks, 4), ks * 64))
        for ks in range(8):
            a('s_waitcnt lgkmcnt(%d)' % (7 - ks))
            a('v_mfma_f32_16x16x32_bf16 v[12:15], %s, %s, %s' % (
                vr(FO + 4 * ks, 4), vr(OP + 4 * ks, 4), '0' if ks == 0 else 'v[12:15]'))
        self.ror('v_add_f32', range(12, 16), [4])
        a('v_cvt_pk_bf16_f32 v%d, v12, v13' % G)
        a('v_cvt_pk_bf16_f32 v%d, v14, v15' % (G + 1))
        a('s_mov_b64 exec, %s' % sp(S_MK))
        a('buffer_store_dwordx4 %s, v7, %s, 0 offen sc1' % (vr(G, 4), srd(SRD_WS)))
        a('s_mov_b64 exec, -1')
        self.stamp(14)
        a('s_cmp_lt_u32 s%d, 4' % S_CW)
        a('s_cbranch_scc1 %s' % ('L_FIN' if o.dev else 'L_END'))
        self.end_red()

    def build(self):
        a = self.a
        hdr = open(os.path.join(os.path.dirname(os.path.abspath(__file__)), '..', NAME + '.s.ref')).read()
        head = []
        for line in hdr.split('\n'):
            if line.startswith('; @launch'):
                head.append('; @launch grid=(256,1,1) block=(576,1,1) lds=%d' % LDS_BYTES)
            elif line.startswith(';'):
                head.append(line)
            else:
                break
        a.raw('\n'.join(head))
        a.raw('.amdgcn_target "amdgcn-amd-amdhsa--gfx950"\n.text\n.globl %s_kernel\n.p2align 8\n'
              '.type %s_kernel,@function\n%s_kernel:' % (NAME, NAME, NAME))
        self.entry()
        self.prologue()
        self.loader()
        self.side()
        self.a_att()
        self.a_svc()
        self.q_abs()
        self.e_svc()
        self.b_att()
        for f in self.tail:
            f()
        if self.o.dev:
            a.label('L_FIN')
            if self.o.probe:
                self.mk_srd(SRD_DBG, P_DBG, 256)
                a('v_readlane_b32 s60, v%d, 57' % V_TS)
                if self.o.pxc >= 0:
                    a('s_and_b32 s7, s2, 7')
                    a('s_cmp_lg_u32 s7, %d' % self.o.pxc)
                    a('s_cbranch_scc1 L_END')
                if self.o.pcl >= 0:
                    a('s_lshr_b32 s61, s%d, 1' % S_R)
                    a('s_sub_u32 s61, s61, 1')
                    a('s_max_i32 s61, s61, 0')
                    a('s_lshl_b32 s61, s61, 2')
                    a('s_lshr_b32 s7, s%d, 2' % S_CW)
                    a('s_min_u32 s7, s7, 2')
                    a('s_add_u32 s61, s61, s7')
                    a('s_cmp_lg_u32 s61, %d' % self.o.pcl)
                    a('s_cbranch_scc1 L_END')
                    a('v_readlane_b32 s60, v%d, %d' % (V_TS, 2 * self.o.pix))
                    a('s_cmp_eq_u32 s60, 0')
                    a('s_cbranch_scc1 L_END')
                a.label('L_PW')
                a('s_sleep 4')
                a('s_memrealtime s[62:63]')
                a('s_waitcnt lgkmcnt(0)')
                a('s_sub_u32 s62, s62, s60')
                a('s_cmp_lt_u32 s62, %d' % (5000 if self.o.probe == 1 else self.o.probe))
                a('s_cbranch_scc1 L_PW')
                if self.o.probe > 1:
                    a('s_endpgm')
                a('v_mov_b32 v2, 0x1000')
                a('s_lshr_b32 s61, s%d, 1' % S_R)
                a('s_sub_u32 s61, s61, 1')
                a('s_max_i32 s61, s61, 0')
                a('s_lshl_b32 s61, s61, 2')
                a('s_lshr_b32 s7, s%d, 2' % S_CW)
                a('s_min_u32 s7, s7, 2')
                a('s_add_u32 s61, s61, s7')
                for cls, st, w in ((1, 2, 4), (5, 5, 5), (8, 8, 6), (8, 9, 7), (8, 11, 8), (5, 13, 9), (2, 4, 10), (6, 4, 11),
                                   (2, 6, 12), (10, 6, 13), (2, 2, 14)):
                    a('s_cmp_eq_u32 s61, %d' % cls)
                    L = a.uniq('PB')
                    a('s_cbranch_scc0 %s' % L)
                    a('s_mov_b32 s7, %d' % (4 * w))
                    a('v_writelane_b32 v2, s7, %d' % (2 * st))
                    a.label(L)
                L = a.uniq('PB')
                a('s_cmp_lg_u32 s%d, 8' % S_WAVE)
                a('s_cbranch_scc1 %s' % L)
                a('s_mov_b32 s7, 12')
                a('v_writelane_b32 v2, s7, 57')
                a('s_not_b32 s60, s60')
                a('v_writelane_b32 v%d, s60, 59' % V_TS)
                a('s_mov_b32 s7, 8')
                a('v_writelane_b32 v2, s7, 59')
                a('s_cmp_lg_u32 s61, 2')
                a('s_cbranch_scc1 %s' % L)
                a('v_readlane_b32 s60, v%d, 8' % V_TS)
                a('s_not_b32 s60, s60')
                a('v_writelane_b32 v%d, s60, 61' % V_TS)
                a('s_mov_b32 s7, 60')
                a('v_writelane_b32 v2, s7, 61')
                a.label(L)
                a('buffer_atomic_umax v%d, v2, %s, 0 offen' % (V_TS, srd(SRD_DBG)))
                a('s_endpgm')
            a('s_mul_i32 s7, s2, 12')
            a('s_add_u32 s%d, s%d, 1' % (S_CW, S_CW))
            a('s_cmp_eq_u32 s%d, 8' % S_WAVE)
            a('s_cselect_b32 s%d, 0, s%d' % (S_CW, S_CW))
            a('s_add_u32 s7, s7, s%d' % S_CW)
            a('s_lshl_b32 s7, s7, 8')
            a('s_add_u32 s7, s7, 0x%x' % WS_TS)
            a('v_lshl_add_u32 v2, v1, 2, s7')
            a('buffer_store_dword v%d, v2, %s, 0 offen' % (V_TS, srd(SRD_WS)))
            if self.o.flow:
                a('s_cmp_lg_u32 s%d, 8' % S_WAVE)
                a('s_cbranch_scc1 L_END')
                a('buffer_store_dword v165, v2, %s, 0 offen offset:2304' % srd(SRD_WS))
        a.label('L_END')
        a('s_endpgm')
        a.raw('''.section .rodata,"a"
.p2align 6
.amdhsa_kernel %s_kernel
  .amdhsa_next_free_vgpr 168
  .amdhsa_next_free_sgpr 102
  .amdhsa_accum_offset 168
  .amdhsa_group_segment_fixed_size 0
  .amdhsa_kernarg_size 112
  .amdhsa_user_sgpr_count 2
  .amdhsa_user_sgpr_kernarg_segment_ptr 1
  .amdhsa_system_sgpr_workgroup_id_x 1
  .amdhsa_float_denorm_mode_32 3
.end_amdhsa_kernel
''' % NAME)
        return a.text()


if __name__ == '__main__':
    opt = Opt()
    out = os.path.join(os.path.dirname(os.path.abspath(__file__)), '..', NAME + '.s')
    for arg in sys.argv[1:]:
        if arg.startswith('out='):
            out = arg[4:]
        else:
            k, v = arg.split('=')
            assert hasattr(opt, k), k
            setattr(opt, k, int(v))
    g = Gen(opt)
    txt = g.build()
    open(out, 'w').write(txt)
    print('wrote', out, len(txt), 'bytes; auto nops:', g.a.nops)
```

```python
import sys
import os
import struct
sys.path.insert(0, os.path.dirname(os.path.abspath(__file__)))
from asmlib import Asm, vr

NAME = 'concat_heads__sliding_block_cached__compressed_kv_cla__decode'


class Opt:
    dev = 0
    d1 = 28
    db0 = 28
    db = 32
    spin = 200000
    xmap = 0
    gdela = 10
    ndel = 12
    qs = 120
    n0 = 9
    pret = 1
    qpre = 1
    hq = 148
    aw = 8
    duk = 40
    gdel = 40
    eo = 0
    kx = 0
    til = 2
    sb = 0
    bh = 1
    eh = 32
    ah = 0
    c1w = 0
    tch = 9
    wqe = 2
    wl2 = 16
    qsl = 1
    fs = 48
    ta0 = 220
    pak = 323232323232
    pav = 242424242424
    te0 = 570
    pek = 31313131
    pev = 27272727
    llo = 20
    lhi = 70
    fa = 0
    tmask = 0x7ffff
    yst = 0
    lhe = 70
    wk = 162432
    wv = 203044
    db1 = 20
    cpf = 1
    dl = 44
    wo1 = 1
    edel = 25
    de1 = 24
    adel = 12
    kv = 6
    fast = 1
    k1 = 6
    na = 6666
    ne = 4444
    ldonly = 0
    bprof = 0
    spread = 0
    flow = 0
    pcl = -1
    pix = 0
    pxc = -1
    probe = 0
    trace = 0


WS_QABS = 0x000000
WS_FLAG = 0x020000
WS_GF = 0x021000
WS_XF = 0x022000
WS_F1 = 0x023000
WS_MLA = 0x024000
WS_ML1 = 0x028000
WS_ML2 = 0x030000
WS_CT2 = 0x200000
WS_QP = 0x100000
WS_YA = 0x280000
WS_YB = 0x2c0000
WS_CD = 0x0c0000
WS_C1 = 0x600000
WS_TS = 0x800000
WS_SIZE = 0x1000000

NSLOT = 16
L_UK = 65536
L_WQ = 98304
QST = 14 * 8192
MISC = 147456
LAND = MISC
FREE = MISC + 256
C_V = MISC + 512
C_NA = MISC + 516
C_QB = MISC + 520
C_SY = MISC + 524
C_MX = MISC + 528
C_O = MISC + 532
C_L2 = MISC + 536
C_CL = MISC + 540
NONA = MISC + 584
QBUF = MISC + 1024
SCB = MISC + 3584
PBA = MISC + 7680
CLAT = MISC + 9728
OB = MISC + 9728
PBUF = MISC + 8192
assert PBUF % 8192 == 0
TML = MISC + 1024
LDS_BYTES = 163840
PWA, K0A = 0, 0
PWE, K0E = 64, 8
PWB = 0
TSLOT = [0, 1, 2, 3, 4, 5, 6, 0, 1, 2, 3, 7, 8, 4, 5, 6]
TSLOTS = sum(x << (4 * i) for i, x in enumerate(TSLOT))

SCALE_LOG2E = 0.08838834764831845 * 1.4426950408889634


def f32bits(x):
    return struct.unpack('<I', struct.pack('<f', x))[0]


P_AX, P_K, P_V, P_WQ, P_WO, P_BX, P_CKV, P_BWQ, P_WUK, P_WUV, P_BWO, P_OUT, P_DBG, P_WS = [8 + 2 * i for i in range(14)]
S_WAVE, S_H, S_R, S_CW = 3, 4, 5, 6
SRD_WS, SRD_DBG, SRD_A, SRD_B, SRD_C, SRD_D = 36, 40, 44, 48, 52, 56
S_T = 60
S_XCC = 78
S_X = 79
S_SPIN = 80
S_SY = 81
S_TS = 82
S_MK, S_MK2, S_MK3, S_MK4 = 84, 86, 88, 90
S_NA = 92
S_NG = 94
S_TAB = 96
S_UNI = 101
V_TS = 167
DPP_ID = 'quad_perm:[0,1,2,3]'


def srd(d):
    return 's[%d:%d]' % (d, d + 3)


def sp(d):
    return 's[%d:%d]' % (d, d + 1)


class Gen:
    def __init__(self, opt):
        self.o = opt
        self.a = Asm()
        self.tail = []
        self.na = [int(c) for c in str(opt.na)]
        self.ne = [int(c) for c in str(opt.ne)]
        self.NA, self.NE = sum(self.na), sum(self.ne)
        assert 4 * self.NA + 2 * self.NE == 128
        assert len(set(self.na)) == 1 and len(set(self.ne)) == 1

    def mk_srd(self, d, p, nbytes):
        a = self.a
        a('s_mov_b32 s%d, s%d' % (d, p))
        a('s_and_b32 s%d, s%d, 0xffff' % (d + 1, p + 1))
        a('s_mov_b32 s%d, 0x%x' % (d + 2, nbytes))
        a('s_mov_b32 s%d, 0x20000' % (d + 3))

    def stamp(self, idx):
        if not self.o.dev:
            return
        a = self.a
        a('s_memrealtime %s' % sp(S_TS))
        a('s_waitcnt lgkmcnt(0)')
        a('v_writelane_b32 v%d, s%d, %d' % (V_TS, S_TS, 2 * idx))
        a('v_writelane_b32 v%d, s%d, %d' % (V_TS, S_TS + 1, 2 * idx + 1))

    def stampd(self, sreg, mul, base):
        if not self.o.dev:
            return
        a = self.a
        a('s_memrealtime %s' % sp(S_TS))
        a('s_mul_i32 s98, s%d, %d' % (sreg, 2 * mul))
        a('s_add_u32 s98, s98, %d' % (2 * base))
        a('s_mov_b32 m0, s98') if False else None
        a('s_waitcnt lgkmcnt(0)')
        a('v_mov_b32 v166, s%d' % S_TS)
        a('v_cmp_eq_u32 vcc, s98, v1')
        a('v_cndmask_b32 v%d, v%d, v166, vcc' % (V_TS, V_TS))
        a('s_add_u32 s98, s98, 1')
        a('v_mov_b32 v166, s%d' % (S_TS + 1))
        a('v_cmp_eq_u32 vcc, s98, v1')
        a('v_cndmask_b32 v%d, v%d, v166, vcc' % (V_TS, V_TS))

    def note(self, idx, sreg):
        if not self.o.dev:
            return
        self.a('v_writelane_b32 v%d, s%d, %d' % (V_TS, sreg, 2 * idx))

    def timeout(self):
        if not self.o.trace:
            return
        a = self.a
        self.nsite = getattr(self, 'nsite', 0) + 1
        import traceback
        st = [f for f in traceback.extract_stack() if f.name not in ('timeout', 'poll', 'mpoll', 'retry', 'lds_wait')]
        print('site', self.nsite, [(f.name, f.lineno) for f in st[-3:]], getattr(self, 'site_note', ''))
        a('s_mov_b64 s[98:99], exec')
        a('s_mov_b64 exec, 1')
        a('s_lshl_b32 s100, s%d, 8' % S_WAVE)
        a('s_or_b32 s100, s100, s2')
        a('s_bitset1_b32 s100, 31')
        a('v_mov_b32 v166, s100')
        a('v_mov_b32 v167, 0x%x' % (0x900000 + 4 * self.nsite))
        a('global_store_dword v167, v166, %s sc1' % sp(P_WS))
        a('s_mov_b64 exec, s[98:99]')

    def end(self):
        a = self.a
        a('s_branch L_FIN' if self.o.dev else 's_endpgm')

    def lds_add(self, addr, va, vb, val=1, lanes=1, drain=True):
        a = self.a
        if isinstance(addr, int):
            if lanes == 1:
                a('v_mov_b32 v%d, 0x%x' % (va, addr))
            else:
                a('v_lshlrev_b32 v%d, 2, v1' % va)
                a('v_add_u32 v%d, 0x%x, v%d' % (va, addr, va))
        else:
            if lanes == 1:
                a('v_mov_b32 v%d, s%d' % (va, addr[1]))
            else:
                a('v_lshl_add_u32 v%d, v1, 2, s%d' % (va, addr[1]))
        a('v_mov_b32 v%d, %s' % (vb, val))
        if drain:
            a('s_waitcnt lgkmcnt(0)')
        a('s_mov_b64 exec, %d' % ((1 << lanes) - 1))
        a('ds_add_u32 v%d, v%d' % (va, vb))
        a('s_mov_b64 exec, -1')

    def lds_wait(self, addr, target, va, vb, sleep=1):
        a = self.a
        L, Ld = a.uniq('LW'), a.uniq('LWD')
        a('v_mov_b32 v%d, %s' % (va, addr if isinstance(addr, str) else '0x%x' % addr))
        a('s_mov_b32 s%d, %d' % (S_SPIN, self.o.spin * 8))
        a.label(L)
        a('ds_read_b32 v%d, v%d' % (vb, va))
        a('s_waitcnt lgkmcnt(0)')
        a('v_readfirstlane_b32 s%d, v%d' % (S_X, vb))
        a('s_cmp_ge_u32 s%d, %s' % (S_X, target))
        a('s_cbranch_scc1 %s' % Ld)
        if sleep:
            a('s_sleep %d' % sleep)
        a('s_sub_u32 s%d, s%d, 1' % (S_SPIN, S_SPIN))
        a('s_cmp_lg_u32 s%d, 0' % S_SPIN)
        a('s_cbranch_scc1 %s' % L)
        self.timeout()
        a.label(Ld)

    def sync(self, va, vb, n=8):
        a = self.a
        a('s_add_u32 s%d, s%d, %d' % (S_SY, S_SY, n))
        self.lds_add(C_SY, va, vb, drain=False)
        self.lds_wait(C_SY, 's%d' % S_SY, va, vb, sleep=0)

    def get_nonce(self, which, va):
        a = self.a
        c, n, s = C_NA, NONA, S_NA
        if self.o.ldonly:
            a('v_mov_b32 v%d, 0' % (va + 2))
            a('v_mov_b32 v%d, 0' % (va + 3))
            return
        self.lds_wait(c, 1, va, va + 1, sleep=1)
        a('v_mov_b32 v%d, 0x%x' % (va, n))
        a('ds_read_b64 v[%d:%d], v%d' % (va + 2, va + 3, va))
        a('s_waitcnt lgkmcnt(0)')
        a('v_readfirstlane_b32 s%d, v%d' % (s, va + 2))
        a('v_readfirstlane_b32 s%d, v%d' % (s + 1, va + 3))

    def tags_bad(self, tagregs, non):
        a = self.a
        for i, t in enumerate(tagregs):
            if i == 0:
                a('v_cmp_ne_u64 %s, %s, v[%d:%d]' % (sp(S_MK4), sp(non), t, t + 1))
            else:
                a('v_cmp_ne_u64 vcc, %s, v[%d:%d]' % (sp(non), t, t + 1))
                a('s_or_b64 %s, %s, vcc' % (sp(S_MK4), sp(S_MK4)))
        a('s_cmp_lg_u64 %s, 0' % sp(S_MK4))

    def poll(self, loads, check, sleep, first_issued=False):
        a = self.a
        L, L2, Ld = a.uniq('P'), a.uniq('PP'), a.uniq('PD')
        if not first_issued:
            a('s_mov_b32 s%d, %d' % (S_SPIN, self.o.spin))
        else:
            a('s_mov_b32 s%d, %d' % (S_SPIN, self.o.spin))
            a('s_branch %s' % L2)
        a.label(L)
        loads()
        a.label(L2)
        a('s_waitcnt vmcnt(0)')
        check()
        a('s_cbranch_scc0 %s' % Ld)
        if sleep:
            a('s_sleep %d' % sleep)
        a('s_sub_u32 s%d, s%d, 1' % (S_SPIN, S_SPIN))
        a('s_cmp_lg_u32 s%d, 0' % S_SPIN)
        a('s_cbranch_scc1 %s' % L)
        self.timeout()
        a.label(Ld)

    def st2(self, texts):
        a = self.a
        if not self.o.fast:
            for x in texts:
                a(x + ' sc1' if x.startswith('buffer') else x)
            return
        L1, L2 = a.uniq('SU'), a.uniq('SV')
        a('s_cmp_eq_u32 s%d, 0' % S_UNI)
        a('s_cbranch_scc1 %s' % L1)
        for x in texts:
            a(x)
        a.label(L2)

        def slow():
            a.label(L1)
            a.fence(4)
            for x in texts:
                a(x + ' sc1' if x.startswith('buffer') else x)
            a('s_branch %s' % L2)
        self.tail.append(slow)

    def verdict(self, va, vb, sleep=1):
        self.lds_wait(C_V, 16, va, vb, sleep=sleep)
        self.a('s_and_b32 s%d, s%d, 15' % (S_UNI, S_X))

    def wave_tab(self, wreg, sb, sstart, sn):
        a = self.a
        a('s_lshl_b32 s7, s%d, 4' % wreg)
        a('s_lshr_b64 %s, %s, s7' % (sp(S_MK4), sp(S_TAB)))
        a('s_and_b32 s%d, s%d, 3' % (sb, S_MK4))
        a('s_bfe_u32 s%d, s%d, 0x50002' % (sstart, S_MK4))
        if sn is not None:
            a('s_bfe_u32 s%d, s%d, 0x40008' % (sn, S_MK4))

    def load_tab(self):
        import itertools
        a = self.a
        ns = [self.na] * 4 + [self.ne] * 2

        def solve(r, tot):
            if r == 6:
                return [] if tot == [32] * 4 else None
            for p in itertools.permutations(range(4)):
                t2 = list(tot)
                for w in range(4):
                    t2[p[w]] += ns[r][w]
                if max(t2) - min(t2) > 1:
                    continue
                s = solve(r + 1, t2)
                if s is not None:
                    return [p] + s
            return None
        perm = solve(0, [0] * 4)
        nxt = [0] * 4
        tabs = []
        for r in range(6):
            t = 0
            for w in range(4):
                b = perm[r][w]
                t |= (b | nxt[b] << 2 | ns[r][w] << 8) << (16 * w)
                nxt[b] += ns[r][w]
            tabs.append(t)
        for k in range(2):
            a('s_mov_b32 s%d, 0x%x' % (S_TAB + k, (tabs[0] >> (32 * k)) & 0xffffffff))
        for r in range(1, 6):
            a('s_cmp_eq_u32 s%d, %d' % (S_R, r))
            for k in range(2):
                a('s_cselect_b32 s%d, 0x%x, s%d' % (S_TAB + k, (tabs[r] >> (32 * k)) & 0xffffffff, S_TAB + k))

    def mpoll(self, n, load, tag, ms, sleep, non=S_NA, base='-1', first=None, limit=None, bad=None):
        a = self.a
        L, Lc, Ld = a.uniq('M'), a.uniq('MC'), a.uniq('MD')
        import traceback
        note = str([(f.name, f.lineno) for f in traceback.extract_stack()[-3:-1]])
        a('s_mov_b64 exec, %s' % base)
        for i in range(n):
            load(i)
        if first:
            first()
        a('s_mov_b32 s%d, %d' % (S_SPIN, self.o.spin))
        a.label(Lc)
        a('s_mov_b64 exec, %s' % base)
        a('s_waitcnt vmcnt(0)')
        for i in range(n):
            if bad:
                bad(i, ms + 2 * i)
            else:
                a('v_cmp_ne_u64 %s, %s, v[%d:%d]' % (sp(ms + 2 * i), sp(non), tag(i), tag(i) + 1))
        if n == 1:
            a('s_cmp_lg_u64 %s, 0' % sp(ms))
        else:
            a('s_or_b64 %s, %s, %s' % (sp(S_MK4), sp(ms), sp(ms + 2)))
        for i in range(2, n):
            a('s_or_b64 %s, %s, %s' % (sp(S_MK4), sp(S_MK4), sp(ms + 2 * i)))
        a('s_cbranch_scc1 %s' % L)
        a.label(Ld)
        a('s_mov_b64 exec, -1')

        def retry():
            a.label(L)
            if sleep:
                a('s_sleep %d' % sleep)
            a('s_sub_u32 s%d, s%d, 1' % (S_SPIN, S_SPIN))
            a('s_cmp_le_u32 s%d, %d' % (S_SPIN, self.o.spin - limit[0] if limit else 0))
            if self.o.trace and not limit:
                Lt = a.uniq('TO')
                a('s_cbranch_scc0 %s' % Lt)
                self.site_note = note
                self.timeout()
                self.site_note = ''
                a('s_branch %s' % Ld)
                a.label(Lt)
            else:
                a('s_cbranch_scc1 %s' % (limit[1] if limit else Ld))
            for i in range(n):
                Ls = a.uniq('RS')
                a('s_mov_b64 exec, %s' % sp(ms + 2 * i))
                a('s_cbranch_execz %s' % Ls)
                load(i)
                a.label(Ls)
            a('s_branch %s' % Lc)
        self.tail.append(retry)
        return Ld

    def pretouch(self, vaddr, vt, lanes, soff='0'):
        a = self.a
        if not self.o.pret:
            return
        a('v_mov_b32 v%d, 0' % vt)
        a('s_mov_b64 exec, %s' % lanes)
        a('buffer_store_dword v%d, v%d, %s, %s offen' % (vt, vaddr, srd(SRD_WS), soff))
        a('buffer_load_dword v%d, v%d, %s, %s offen sc1 nt' % (vt, vaddr, srd(SRD_WS), soff))
        a('s_mov_b64 exec, -1')

    def zero_lds(self, va, vz):
        a = self.a
        a('v_lshlrev_b32 v%d, 2, v0' % va)
        a('v_mov_b32 v%d, 0' % vz)
        a('v_add_u32 v%d, 0x%x, v%d' % (va, MISC - 1024, va))
        a('ds_write_b32 v%d, v%d' % (va, vz))

    def fetch_nonce(self, t, vz):
        a, o = self.a, self.o
        LL, LG = a.uniq('NL'), a.uniq('NH')
        a('s_mov_b32 s%d, %d' % (S_SPIN, o.spin * 4))
        a('s_sleep %d' % o.ndel)
        a.label(LL)
        a('s_mov_b64 exec, 1')
        a('buffer_load_dwordx2 v[%d:%d], v%d, %s, 0 offen sc1' % (t + 1, t + 2, vz, srd(SRD_DBG)))
        a('s_mov_b64 exec, -1')
        a('s_waitcnt vmcnt(0)')
        a('v_readfirstlane_b32 s%d, v%d' % (S_NA, t + 1))
        a('v_readfirstlane_b32 s%d, v%d' % (S_NA + 1, t + 2))
        a('s_sub_u32 s%d, s%d, 1' % (S_SPIN, S_SPIN))
        a('s_cbranch_scc1 %s' % LG)
        a('s_cmp_eq_u32 s%d, 0' % (S_NA + 1))
        a('s_cbranch_scc1 %s' % LL)
        a('s_sub_u32 s7, s%d, 1500' % S_NG)
        a('s_lshl_b32 s7, s7, 5')
        a('s_sub_u32 s7, s%d, s7' % S_NA)
        a('s_cmp_ge_i32 s7, 0')
        a('s_cbranch_scc1 %s' % LG)
        a('s_cmp_gt_u32 s%d, %d' % (S_SPIN, o.spin * 4 - 40))
        a('s_cbranch_scc1 %s' % LL)
        a.label(LG)
        self.note(29, S_SPIN)
        a('v_mov_b32 v%d, 0x%x' % (t, NONA))
        a('v_mov_b32 v%d, s%d' % (t + 1, S_NA))
        a('v_mov_b32 v%d, s%d' % (t + 2, S_NA + 1))
        a('ds_write_b64 v%d, v[%d:%d]' % (t, t + 1, t + 2))
        self.lds_add(C_NA, t, t + 3, drain=False)

    def local(self, va, vd, lanes, rounds, sleep, issued=False):
        a = self.a
        L, L2, Ld = a.uniq('U'), a.uniq('UU'), a.uniq('UD')
        a('s_or_b32 s%d, s%d, s%d' % (S_NG + 1, S_NG + 1, S_XCC))
        a('s_add_u32 s%d, s%d, 0x10000' % (S_MK3, S_NG))
        a('s_addc_u32 s%d, s%d, 0' % (S_MK3 + 1, S_NG + 1))
        a('s_mov_b32 s%d, %d' % (S_UNI, rounds))
        a('s_mov_b64 exec, %s' % lanes)
        if issued:
            a('s_branch %s' % L2)
        a.label(L)
        a('buffer_load_dwordx2 v[%d:%d], v%d, %s, 0 offen sc1 nt' % (vd, vd + 1, va, srd(SRD_WS)))
        a.label(L2)
        a('s_waitcnt vmcnt(0)')
        a('v_cmp_gt_u64 %s, %s, v[%d:%d]' % (sp(S_MK4), sp(S_NG), vd, vd + 1))
        a('v_cmp_le_u64 vcc, %s, v[%d:%d]' % (sp(S_MK3), vd, vd + 1))
        a('s_or_b64 vcc, vcc, %s' % sp(S_MK4))
        a('s_cbranch_scc0 %s' % Ld)
        a('s_sleep %d' % sleep)
        a('s_sub_u32 s%d, s%d, 1' % (S_UNI, S_UNI))
        a('s_cmp_lg_u32 s%d, 0' % S_UNI)
        a('s_cbranch_scc1 %s' % L)
        a.label(Ld)
        a('s_mov_b64 exec, -1')

    def group_check(self, t):
        a = self.a
        a('s_lshl_b32 s7, s%d, 7' % S_H)
        a('s_add_u32 s7, s7, 0x%x' % WS_GF)
        a('v_lshl_add_u32 v%d, v1, 3, s7' % t)
        self.local(t, t + 2, '0x3f', self.o.kv, 8)
        a('s_min_u32 s7, s%d, 1' % S_UNI)
        a('s_add_u32 s7, s7, 16')
        self.lds_add(C_V, t, t + 1, val='s7', drain=False)

    def b_index(self, sd):
        a = self.a
        a('s_and_b32 s%d, s%d, 7' % (sd, S_H))
        a('s_lshl_b32 s%d, s%d, 3' % (sd, sd))
        a('s_lshr_b32 s7, s%d, 3' % S_H)
        a('s_lshl_b32 s7, s7, 1')
        a('s_add_u32 s%d, s%d, s7' % (sd, sd))
        a('s_add_u32 s%d, s%d, s%d' % (sd, sd, S_R))
        a('s_sub_u32 s%d, s%d, 6' % (sd, sd))

    def xlane_rows(self, op, regs, tmp):
        a = self.a
        for sw in ('v_permlane32_swap_b32', 'v_permlane16_swap_b32'):
            for i, r in enumerate(regs):
                a('v_mov_b32 v%d, v%d' % (tmp + i, r))
            for i, r in enumerate(regs):
                a('%s v%d, v%d' % (sw, r, tmp + i))
            for i, r in enumerate(regs):
                a('%s v%d, v%d, v%d' % (op, r, r, tmp + i))

    def ror(self, op, regs, shifts):
        for sh in shifts:
            for r in regs:
                self.a('%s_dpp v%d, v%d, v%d row_ror:%d row_mask:0xf bank_mask:0xf' % (op, r, r, r, sh))

    def entry(self):
        a = self.a
        a('s_cmp_ge_u32 s2, 256')
        a('s_cbranch_scc1 L_END')
        a('s_load_dwordx16 s[8:23], s[0:1], 0')
        a('s_load_dwordx8 s[24:31], s[0:1], 64')
        a('s_load_dwordx4 s[32:35], s[0:1], 96')
        a('s_memrealtime %s' % sp(S_NG))
        a('v_lshrrev_b32 v1, 6, v0')
        a('v_readfirstlane_b32 s%d, v1' % S_WAVE)
        a('v_and_b32 v1, 63, v0')
        a('v_lshrrev_b32 v2, 4, v1')
        a('v_and_b32 v3, 15, v1')
        if self.o.dev:
            a('v_mov_b32 v%d, 0' % V_TS)
        if self.o.probe:
            a('s_waitcnt lgkmcnt(0)')
            a('v_writelane_b32 v%d, s%d, 57' % (V_TS, S_NG))
        if self.o.xmap:
            a('s_lshr_b32 s%d, s2, 3' % S_H)
            a('s_and_b32 s%d, s2, 7' % S_R)
        else:
            a('s_and_b32 s%d, s2, 7' % S_H)
            a('s_lshr_b32 s7, s2, 6')
            a('s_lshl_b32 s7, s7, 3')
            a('s_or_b32 s%d, s%d, s7' % (S_H, S_H))
            a('s_bfe_u32 s%d, s2, 0x30003' % S_R)
            if self.o.spread:
                a('s_lshr_b32 s7, s2, 1')
                a('s_and_b32 s7, s7, s2')
                a('s_lshr_b32 s7, s7, 4')
                a('s_and_b32 s7, s7, 2')
                a('s_xor_b32 s%d, s%d, s7' % (S_R, S_R))
        a('s_getreg_b32 s%d, hwreg(HW_REG_XCC_ID, 0, 4)' % S_XCC)
        a('s_lshl_b32 s%d, s%d, 26' % (S_XCC, S_XCC))
        a('s_xor_b32 s%d, s%d, 4' % (S_CW, S_WAVE))
        a('s_cmp_eq_u32 s%d, 8' % S_WAVE)
        a('s_cselect_b32 s7, 8, 0')
        a('s_add_u32 s7, s7, s%d' % S_R)
        a('s_cmp_ge_u32 s7, 14')
        a('s_cbranch_scc1 L_LDB')
        a('s_cmp_ge_u32 s7, 12')
        a('s_cbranch_scc1 L_LDE')
        a('s_cmp_ge_u32 s7, 8')
        a('s_cbranch_scc1 L_LDA')
        a('s_mov_b32 s%d, 0' % S_SY)
        a('s_cmp_lt_u32 s%d, 4' % S_CW)
        a('s_cbranch_scc1 L_SIDE')
        a('s_cmp_ge_u32 s7, 4')
        a('s_cbranch_scc1 L_QABS')

    def voff_tr(self, d, par, lstride):
        a = self.a
        a('v_lshrrev_b32 v%d, 1, v3' % d)
        a('v_xor_b32 v%d, v%d, v2' % (d, d))
        if par:
            a('v_xor_b32 v%d, 4, v%d' % (d, d))
        a('v_lshlrev_b32 v%d, 5, v%d' % (d, d))
        a('v_lshl_add_u32 v%d, v2, %d, v%d' % (d, lstride, d))
        a('v_and_b32 v40, 1, v1')
        a('v_lshl_add_u32 v%d, v40, 4, v%d' % (d, d))

    def voff_row(self, d, lstride):
        a = self.a
        a('v_xor_b32 v%d, v3, v2' % d)
        a('v_lshlrev_b32 v%d, 4, v%d' % (d, d))
        a('v_lshl_add_u32 v%d, v2, %d, v%d' % (d, lstride, d))
        for q in range(1, 4):
            a('v_xor_b32 v%d, 0x%x, v%d' % (d + q, q << 6, d))

    def loader(self):
        a, o = self.a, self.o
        VT8, VR8, VK, VV, VLA, VFA, VF, VL, VC = 4, 6, 10, 14, 16, 17, 18, 19, 20
        sIss, sLand, sSlot, sNeed, sM0, sOff, sCnt, sWr = [S_T + i for i in range(8)]
        sB = [S_T + 8 + i for i in range(4)]
        sB0 = [S_T + 12 + i for i in range(4)]
        sN = S_T + 16

        def init1():
            if o.dev:
                a('s_mov_b32 s99, 0')
                a('s_mov_b32 s100, 0')
            if o.flow:
                a('v_mov_b32 v165, 0')
            a('s_mov_b32 s%d, 0' % sNeed)
            a('v_lshlrev_b32 v%d, 2, v1' % VLA)
            a('v_add_u32 v%d, 0x%x, v%d' % (VFA, FREE, VLA))
            a('v_add_u32 v%d, 0x%x, v%d' % (VLA, LAND, VLA))
            a('v_mov_b32 v%d, 0' % VF)

        def signal(k):
            if k:
                a('s_sub_u32 s7, s%d, %d' % (sIss, k & 0xffffffff))
            a('v_mov_b32 v%d, s%d' % (VL, 7 if k else sIss))
            a('ds_max_i32 v%d, v%d' % (VLA, VL))

        def ld_str(sr_, vof, stride):
            def ld(i):
                a('s_mov_b32 m0, s%d' % sM0)
                a('s_add_u32 s%d, s%d, 1024' % (sM0, sM0))
                a('buffer_load_dwordx4 v%d, %s, s%d offen nt lds' % (vof(i), srd(sr_), sOff))
                a('s_add_u32 s%d, s%d, %d' % (sOff, sOff, stride))
            return ld

        def check(D, lane):
            Lgo, Lst = a.uniq('GO'), a.uniq('ST')
            if o.ldonly:
                return
            a('s_waitcnt lgkmcnt(0)')
            a('v_readlane_b32 s%d, v%d, %s' % (S_X, VF, lane))
            a('s_cmp_lt_u32 s%d, s%d' % (S_X, sNeed))
            a('s_cbranch_scc1 %s' % Lst)
            a.label(Lgo)

            def stall():
                a.label(Lst)

                def recheck():
                    a('ds_read_b32 v%d, v%d' % (VF, VFA))
                    a('s_waitcnt lgkmcnt(0)')
                    a('v_readlane_b32 s%d, v%d, %s' % (S_X, VF, lane))
                    a('s_cmp_ge_u32 s%d, s%d' % (S_X, sNeed))
                    a('s_cbranch_scc1 %s' % Lgo)
                recheck()
                if o.dev:
                    a('s_add_u32 s99, s99, 1')
                    self.note(30, 99)
                    self.stampd(99, 1, 15)
                k = (D - 1) // 8 * 8
                while k >= 0:
                    a('s_waitcnt vmcnt(%d)' % k)
                    signal(k)
                    recheck()
                    k -= 8
                Ls = a.uniq('SP')
                a('s_mov_b32 s%d, %d' % (S_SPIN, o.spin * 8))
                a.label(Ls)
                if o.dev:
                    a('s_add_u32 s100, s100, 1')
                    self.note(31, 100)
                recheck()
                a('s_sub_u32 s%d, s%d, 1' % (S_SPIN, S_SPIN))
                a('s_cmp_lg_u32 s%d, 0' % S_SPIN)
                a('s_cbranch_scc1 %s' % Ls)
                a('s_branch %s' % Lgo)
            self.tail.append(stall)

        def body(D, n, ld, peek=True):
            for i in range(n):
                a('s_waitcnt vmcnt(%d)' % (D - 1))
                if (i - D + 1) % 8 == 0:
                    signal(D - 1 - i)
                ld(i)
                flow(i)
                if i == n - 3 and peek:
                    a('ds_read_b32 v%d, v%d' % (VF, VFA))
            a('s_add_u32 s%d, s%d, %d' % (sIss, sIss, n))

        def loop(cnt, fn):
            if cnt == 0:
                return
            L = a.uniq('LL')
            a('s_mov_b32 s%d, %d' % (sCnt, cnt))
            a.label(L)
            fn()
            a('s_sub_u32 s%d, s%d, 1' % (sCnt, sCnt))
            a('s_cmp_lg_u32 s%d, 0' % sCnt)
            a('s_cbranch_scc1 %s' % L)

        def ld_rows(sr_, vof):
            def ld(i):
                if i & 3 == 0:
                    a('s_add_u32 s7, s%d, %d' % (sM0, i * 1024))
                    a('s_mov_b32 m0, s7')
                    a('s_add_u32 s%d, s%d, %d' % (sOff, sB[0], i * 1024))
                a('buffer_load_dwordx4 v%d, %s, s%d offen offset:%d nt lds' % (vof(i), srd(sr_), sOff, (i & 3) * 1024))
            return ld

        sNow, sDue, sPer, sTk, sTv, sNr = S_MK, S_T + 17, sLand, S_MK2, S_MK3, sN
        sDl, sBk = S_MK4, S_MK4 + 1
        VH = 24

        def flow(i):
            if o.flow and i % 8 == 2:
                a('s_memrealtime %s' % sp(S_TS))
            if o.flow and i % 8 == 4:
                a('s_waitcnt lgkmcnt(0)')
                a('s_add_u32 s98, s%d, %d' % (sIss, i))
                a('s_lshr_b32 s98, s98, 3')
                a('v_mov_b32 v164, s%d' % S_TS)
                a('v_cmp_eq_u32 vcc, s98, v1')
                a('v_cndmask_b32 v165, v165, v164, vcc')

        def half(D, hh, sr_, vo, vh, nv):
            assert D % 2 == 0
            for i in range(16):
                w = 2 * hh + (i >> 3)
                xm = (0, w << 13, (w & 1) << 14, (w >> 1) << 14, w << 14)[o.kx]
                if i & 7 == 0 and xm:
                    a('s_xor_b32 s%d, s%d, %d' % (sOff, sB[w], xm))
                if i & 3 == 0:
                    a('s_add_u32 m0, s%d, %d' % (sM0, w * 8192 + (i & 4) * 1024))
                if i & 1 == 0:
                    a('s_waitcnt vmcnt(%d)' % (D - 2))
                    if (i - D + 2) % 8 == 0:
                        signal(D - 2 - i)
                a('buffer_load_dwordx4 v%d, %s, s%d offen offset:%d nt lds' % (
                    (vh if i & 4 else vo) + i % nv, srd(sr_), sOff if xm else sB[w], (i & 3) * 1024))
                flow(i)
                if i == 12:
                    a('s_memrealtime %s' % sp(sNow))
                    if hh:
                        a('ds_read_b32 v%d, v%d' % (VF, VFA))
                if i & 7 == 7:
                    a('s_add_u32 s%d, s%d, %s' % (sB[w], sB[w], 's%d' % sDl if o.eo else '8192'))

        def adv():
            a('s_add_u32 s%d, s%d, 1' % (sSlot, sSlot))
            a('s_and_b32 s%d, s%d, 3' % (sSlot, sSlot))
            a('s_lshl_b32 s%d, s%d, 15' % (sM0, sSlot))
            a('s_cmp_eq_u32 s%d, 2' % sSlot)
            a('s_cselect_b32 s7, 4, 0')
            a('s_add_u32 s%d, s%d, s7' % (sNeed, sNeed))

        def rounds(ws, sr_, vo, vh, nv):
            ws = [ws // 10000, ws // 100 % 100, ws % 100]
            L = a.uniq('RD')
            a.label(L)
            a('s_and_b32 s%d, s%d, 0xff' % (sPer, sTk))
            a('s_lshl_b32 s%d, s%d, 6' % (sPer, sPer))
            a('s_lshr_b64 %s, %s, 8' % (sp(sTk), sp(sTk)))
            if o.eo:
                a('s_lshr_b32 s7, s%d, 1' % sNr)
                a('s_add_u32 s7, s7, 1')
                a('s_cmp_eq_u32 s%d, s7' % sCnt)
                a('s_cselect_b32 s%d, s%d, 16384' % (sDl, sBk))
            check(ws[2], 's%d' % sSlot)
            for hh in range(2):
                Ls, Lb, Lj = a.uniq('WS'), a.uniq('WB'), a.uniq('WJ')
                if hh or o.ldonly:
                    a('s_waitcnt lgkmcnt(0)')
                a('s_lshl_b32 s7, s%d, 5' % sNow)
                a('s_sub_u32 s7, s7, s%d' % sDue)
                a('s_add_u32 s%d, s%d, s%d' % (sDue, sDue, sPer))
                a('s_cmp_lt_i32 s7, %d' % (-32 * o.llo))
                a('s_cbranch_scc1 %s' % Ls)
                a('s_cmp_gt_i32 s7, s%d' % S_SY)
                a('s_cbranch_scc1 %s' % Lb)
                half(ws[1], hh, sr_, vo, vh, nv)
                a('s_branch %s' % Lj)
                a.label(Ls)
                half(ws[0], hh, sr_, vo, vh, nv)
                a('s_branch %s' % Lj)
                a.label(Lb)
                half(ws[2], hh, sr_, vo, vh, nv)
                a.label(Lj)
                a('s_add_u32 s%d, s%d, 16' % (sIss, sIss))
            adv()
            a('s_sub_u32 s%d, s%d, 1' % (sCnt, sCnt))
            a('s_cmp_lg_u32 s%d, 0' % sCnt)
            a('s_cbranch_scc1 %s' % L)

        def drain(D, extra=0):
            k = (D - 1) // 8 * 8
            while k >= 0:
                a('s_waitcnt vmcnt(%d)' % (k + extra))
                signal(k)
                k -= 8

        def head(ld, n, early=False):
            if not early:
                a('s_barrier')
            self.stamp(0)
            for i in range(n):
                ld(i)
            if early:
                a('s_barrier')
            init1()
            a('s_mov_b32 s%d, %d' % (sIss, n))
            self.mk_srd(SRD_WS, P_WS, WS_SIZE)

        def kv_setup():
            self.load_tab()
            self.voff_row(VK, 8)
            self.voff_tr(VV, 0, 8)
            a('v_xor_b32 v%d, 0x80, v%d' % (VV + 1, VV))
            for k in range(6):
                a('v_add_u32 v%d, 4096, v%d' % (VH + k, VK + k))
            for w in range(4):
                a('s_mov_b32 s%d, %d' % (sN, w))
                self.wave_tab(sN, sB[w], sB0[w], None)
                a('s_lshl_b32 s%d, s%d, 5' % (sB[w], sB[w]))
                a('s_add_u32 s%d, s%d, s%d' % (sB[w], sB[w], S_H))
                a('s_lshl_b32 s%d, s%d, 20' % (sB[w], sB[w]))
                a('s_lshl_b32 s%d, s%d, 13' % (sB0[w], sB0[w]))
                a('s_add_u32 s%d, s%d, s%d' % (sB0[w], sB0[w], sB[w]))
                a('s_add_u32 s%d, s%d, 0xC0000' % (sB0[w], sB0[w]))
                a('s_mov_b32 s%d, s%d' % (sB[w], sB0[w]))

        def touch(lst):
            a('s_mov_b64 exec, 1')
            for sr_, so in lst:
                a('buffer_load_dword v100, v%d, %s, %s offen nt' % (VK, srd(sr_), so))
            a('s_mov_b64 exec, -1')

        kvt = [(sr_, 's%d' % sB[w]) for sr_ in (SRD_A, SRD_B) for w in range(4)]

        def per(x, n):
            x = str(x)
            x = [int(x[i:i + 2]) for i in range(0, len(x), 2)]
            if len(x) == 1:
                x = x * n
            assert len(x) == n
            return x

        def sched(t0, pk, pv, nk, n):
            self.get_nonce('a', 40)
            if o.ldonly:
                a('s_lshl_b32 s%d, s%d, 5' % (S_NA, S_NG))
            a('s_add_u32 s%d, s%d, %d' % (sDue, S_NA, 32 * t0))
            for sr_, lst in ((sTk, pk), (sTv, pv)):
                v = sum(x << (8 * i) for i, x in enumerate(lst))
                a('s_mov_b32 s%d, 0x%x' % (sr_, v & 0xffffffff))
                a('s_mov_b32 s%d, 0x%x' % (sr_ + 1, v >> 32))
            a('s_mov_b32 s%d, %d' % (S_SY, 32 * o.lhi))
            a('s_mov_b32 s%d, %d' % (sCnt, nk))
            a('s_mov_b32 s%d, %d' % (sNr, n))
            a('s_mov_b32 s%d, %d' % (sBk, 8192 * (3 - n)))
            a('s_memrealtime %s' % sp(sNow))

        a.label('L_LDA')
        a('s_setprio 3')
        a('v_lshrrev_b32 v%d, 1, v3' % VC)
        a('v_and_b32 v40, 1, v2')
        a('v_xor_b32 v%d, v%d, v40' % (VC, VC))
        a('v_lshlrev_b32 v%d, 5, v%d' % (VC, VC))
        a('v_lshl_add_u32 v%d, v2, 10, v%d' % (VC, VC))
        a('v_and_b32 v40, 1, v1')
        a('v_lshl_add_u32 v%d, v40, 4, v%d' % (VC, VC))
        for j in range(1, 4):
            a('v_xor_b32 v%d, 0x%x, v%d' % (VC + j, j << 6, VC))
        a('s_lshl_b32 s%d, s%d, 17' % (sOff, S_H))
        a('s_lshl_b32 s7, s%d, 8' % S_R)
        a('s_add_u32 s%d, s%d, s7' % (sOff, sOff))
        a('s_mov_b32 s%d, s%d' % (sWr, sOff))
        a('s_mov_b32 s%d, 0' % sM0)
        kv_setup()
        a('s_waitcnt lgkmcnt(0)')
        self.mk_srd(SRD_D, P_WO, 4194304)
        self.mk_srd(SRD_A, P_K, 134217728)
        self.mk_srd(SRD_B, P_V, 134217728)
        head(None, 0)
        if o.tch & 1:
            self.mk_srd(SRD_C, P_OUT, 8192)
            a('s_lshl_b32 s7, s%d, 8' % S_H)
            touch(kvt + [(SRD_D, 's%d' % sWr), (SRD_C, 's7')])
        if o.tch & 8:
            a('s_lshl_b32 s7, s2, 14')
            for p in (P_WUV, P_BWO):
                self.mk_srd(SRD_C, p, 4194304)
                touch([(SRD_C, 's7')])
        a('s_mov_b32 s%d, 0' % sSlot)
        a('s_mov_b32 s%d, 16384' % sDl)
        for hh in range(2):
            if hh == o.ah:
                if not o.ldonly:
                    self.lds_wait(C_MX, o.aw, 40, 41, sleep=0)
                self.stamp(1)
            half(o.d1, hh, SRD_A, VK, VH, 4)
            a('s_add_u32 s%d, s%d, 16' % (sIss, sIss))
        adv()
        pk = per(o.pak, self.na[0])
        sched(o.ta0 + 4 * pk[0], pk[1:], per(o.pav, self.na[0]), self.na[0] - 1, self.na[0])
        a.label('L_KV')
        rounds(o.wk, SRD_A, VK, VH, 4)
        self.stamp(2)
        for w in range(4):
            a('s_mov_b32 s%d, s%d' % (sB[w], sB0[w]))
        a('s_mov_b32 s%d, s%d' % (sCnt, sNr))
        a('s_mov_b64 %s, %s' % (sp(sTk), sp(sTv)))
        a('s_cmp_ge_u32 s%d, 4' % S_R)
        a('s_cselect_b32 s%d, %d, s%d' % (S_SY, 32 * o.lhe, S_SY))
        rounds(o.wv, SRD_B, VV, VH + 4, 2)
        self.stamp(3)
        LE = a.uniq('KE')
        a('s_cmp_ge_u32 s%d, 4' % S_R)
        a('s_cbranch_scc1 %s' % LE)
        a('s_mov_b32 s%d, s%d' % (sOff, sWr))
        check(o.dl, 's%d' % sSlot)
        loop(2, lambda: body(o.dl, 16, ld_str(SRD_D, lambda i: VC + (i >> 2), 4096), peek=False))
        a.label(LE)
        drain(max(o.dl, o.wv % 100))
        self.stamp(4)
        self.end()

        a.label('L_LDE')

        a('s_setprio 3')
        self.voff_row(VR8, 13)
        a('s_lshl_b32 s%d, s%d, 21' % (sOff, S_R))
        a('s_lshl_b32 s7, s%d, 8' % S_H)
        a('s_add_u32 s%d, s%d, s7' % (sOff, sOff))
        a('s_sub_u32 s%d, s%d, 0x800000' % (sOff, sOff))
        a('s_mov_b32 s%d, 0x%x' % (sM0, L_UK))
        a('s_waitcnt lgkmcnt(0)')
        self.mk_srd(SRD_C, P_WUK, 4194304)
        ld_uk = ld_str(SRD_C, lambda i: VR8 + (i & 3), 32768)
        head(ld_uk, o.eh, True)
        self.mk_srd(SRD_D, P_WUV, 4194304)
        self.mk_srd(SRD_A, P_K, 134217728)
        self.mk_srd(SRD_B, P_V, 134217728)
        self.voff_tr(VC, 0, 13)
        a('v_xor_b32 v%d, 0x80, v%d' % (VC + 1, VC))
        for j in range(2, 4):
            a('v_mov_b32 v%d, 0' % (VC + j))
        a('s_mov_b32 s%d, 0' % sWr)
        kv_setup()
        if o.tch & 2:
            a('s_mov_b32 s7, 0x200000')
            touch([(SRD_D, '0'), (SRD_D, 's7')] + kvt)
        loop((64 - o.eh) // 8, lambda: body(o.duk, 8, ld_uk, peek=False))
        if o.hq and not o.ldonly:
            drain(o.duk)
            self.lds_wait(C_QB, o.hq, 40, 41, sleep=0)
        self.stamp(1)
        a('s_lshl_b32 s%d, s%d, 8' % (sOff, S_H))
        a('s_lshl_b32 s7, s%d, 21' % S_R)
        a('s_add_u32 s%d, s%d, s7' % (sOff, sOff))
        a('s_sub_u32 s%d, s%d, 0x800000' % (sOff, sOff))
        a('s_mov_b32 s%d, 0' % sM0)
        loop(8, lambda: body(o.de1, 8, ld_str(SRD_D, lambda i: VC + (i & 1), 32768)))
        a('s_mov_b32 s%d, 2' % sSlot)
        a('s_mov_b32 s%d, 4' % sNeed)
        sched(o.te0, per(o.pek, self.ne[0]), per(o.pev, self.ne[0]), self.ne[0], self.ne[0])
        a('s_branch L_KV')

        a.label('L_LDB')
        sBi = sB[1]
        a('s_setprio 3')
        a('v_lshlrev_b32 v%d, 4, v1' % VC)
        for i in range(1, 16):
            f = ((i & 3) << 2) | (i >> 2)
            a('v_xor_b32 v%d, 0x%x, v%d' % (VC + i, f << 4, VC))
        self.b_index(sBi)
        tstr = 131072 if o.til else 16384

        def tadv():
            if o.til > 1:
                a('s_add_u32 s7, s%d, %d' % (sB[0], 16384 * (o.til - 1)))
                a('s_xor_b32 s7, s7, s%d' % sB[0])
                a('s_and_b32 s7, s7, 0x1c000')
                a('s_xor_b32 s%d, s%d, s7' % (sB[0], sB[0]))
            a('s_add_u32 s%d, s%d, %d' % (sB[0], sB[0], tstr))
        if o.til:
            a('s_lshr_b32 s%d, s%d, 3' % (sB[0], sBi))
            a('s_lshl_b32 s%d, s%d, 21' % (sB[0], sB[0]))
            a('s_and_b32 s7, s%d, 7' % sBi)
            a('s_lshl_b32 s7, s7, 14')
            a('s_add_u32 s%d, s%d, s7' % (sB[0], sB[0]))
        else:
            a('s_lshl_b32 s%d, s%d, 18' % (sB[0], sBi))
        a('s_mov_b32 s%d, 0' % sM0)
        a('s_waitcnt lgkmcnt(0)')
        self.mk_srd(SRD_A, P_CKV, 16777216)
        def ld0(i):
            ld_rows(SRD_A, lambda i: VC + i)(i & 15)
            if i & 15 == 15:
                tadv()
                a('s_add_u32 s%d, s%d, 16384' % (sM0, sM0))
        head(ld0, 16 * o.bh, True)
        self.mk_srd(SRD_B, P_BWO, 4194304)
        self.voff_tr(VK, 0, 10)
        a('v_xor_b32 v%d, 0x80, v%d' % (VK + 1, VK))
        if o.tch & 4:
            a('s_mov_b32 s7, 0x200000')
            touch([(SRD_B, '0'), (SRD_B, 's7')])
        nf = min(o.n0, 7)
        tab = [1 if T < o.n0 else 1 | 8 for T in range(nf, 11)] + [1 | 4] * 2 + [2] * 3
        tv = sum(x << (4 * i) for i, x in enumerate(tab))
        a('s_mov_b32 s%d, 0x%x' % (sB0[0], tv & 0xffffffff))
        a('s_mov_b32 s%d, 0x%x' % (sB0[1], tv >> 32))
        a('s_mov_b32 s%d, 0x%x' % (sB0[2], (TSLOTS >> (4 * nf)) & 0xffffffff))
        a('s_mov_b32 s%d, 0x%x' % (sB0[3], TSLOTS >> (4 * nf + 32)))
        self.stamp(1)

        def tile(D, chk):
            def fn():
                if chk:
                    a('s_and_b32 s%d, s%d, 3' % (sNeed, sB0[0]))
                    a('s_lshl_b32 s%d, s%d, 3' % (sNeed, sNeed))
                    a('s_bfe_u32 s%d, s%d, 0x20002' % (sSlot, sB0[0]))
                    a('s_lshr_b64 %s, %s, 4' % (sp(sB0[0]), sp(sB0[0])))
                    a('s_and_b32 s%d, s%d, 15' % (sM0, sB0[2]))
                    a('s_lshl_b32 s%d, s%d, 14' % (sM0, sM0))
                    a('s_lshr_b64 %s, %s, 4' % (sp(sB0[2]), sp(sB0[2])))
                    check(D, 's%d' % sSlot)
                body(D, 16, ld_rows(SRD_A, lambda i: VC + i), peek=chk)
                tadv()
                if not chk:
                    a('s_add_u32 s%d, s%d, 16384' % (sM0, sM0))
            return fn
        loop(nf - o.bh, tile(o.db0, False))
        self.stamp(2)
        loop(o.n0 - nf, tile(o.db1, True))
        loop(16 - o.n0, tile(o.db, True))
        self.stamp(3)
        a('s_lshr_b32 s%d, s%d, 3' % (sOff, sBi))
        a('s_lshl_b32 s%d, s%d, 17' % (sOff, sOff))
        a('s_and_b32 s7, s%d, 3' % sBi)
        a('s_lshl_b32 s7, s7, 8')
        a('s_add_u32 s%d, s%d, s7' % (sOff, sOff))
        a('s_and_b32 s7, s%d, 4' % sBi)
        a('s_lshl_b32 s7, s7, 19')
        a('s_add_u32 s%d, s%d, s7' % (sOff, sOff))
        a('s_mov_b32 s%d, 0' % sM0)
        a('s_mov_b32 s%d, 24' % sNeed)
        check(o.db, '0')

        def wo_head():
            body(o.db, 16, ld_str(SRD_B, lambda i: VK + (i & 1), 4096), peek=False)
            a('s_bitcmp0_b32 s%d, 14' % sM0)
            a('s_cselect_b32 s7, %d, 0' % (7 * 131072))
            a('s_add_u32 s%d, s%d, s7' % (sOff, sOff))
        if o.wo1:
            assert o.db + 16 <= 63
            for i in range(16):
                ld_str(SRD_B, lambda i: VK + (i & 1), 4096)(i)
            drain(o.db, 16)
            a('s_add_u32 s%d, s%d, 16' % (sIss, sIss))
            loop(o.wo1 - 1, wo_head)
        drain(o.db)
        self.stamp(4)
        if not o.ldonly and o.wo1 < 4:
            self.lds_wait(C_L2, o.wl2, 48, 49, sleep=1)
        self.stamp(7)

        loop(4 - o.wo1, wo_head)
        drain(o.db)
        self.stamp(8)
        if True:
            self.end()
            a.label('L_RED')
            a('s_and_b32 s7, s%d, 7' % S_H)
            a('s_cbranch_scc1 %s' % ('L_FIN' if o.dev else 'L_END'))
            a('s_add_u32 s%d, s%d, s%d' % (S_T + 1, S_H, S_R))
            a('s_and_b32 s7, s%d, 3' % S_CW)
            a('s_cmp_eq_u32 s7, 3')
            a('s_cbranch_scc1 %s' % ('L_FIN' if o.dev else 'L_END'))
            a('s_cmp_eq_u32 s7, 2')
            a('s_cbranch_scc1 L_REDB')
            a('s_lshl_b32 s%d, s%d, 1' % (S_T, S_T + 1))
            a('s_add_u32 s%d, s%d, s7' % (S_T, S_T))
            self.reducer(False)
            a.label('L_REDB')
            self.reducer(True)

    def reducer(self, isb):
        a, o = self.a, self.o
        Y, T, AC = 48, 36, 44
        if o.ldonly:
            self.end()
            return
        sU, sO2, sK, MS = S_T, S_T + 1, S_MK, S_T + 2
        n = 4
        self.mk_srd(SRD_C, P_OUT, 8192)
        a('s_mov_b32 s%d, 0x3f80' % sK)
        a('s_mov_b32 s%d, 0x3f800000' % (sK + 1))
        if isb:
            sTl = sO2
            a('s_lshl_b32 s7, s%d, 12' % sTl)
            a('s_add_u32 s7, s7, 0x%x' % WS_YB)
            a('v_lshl_add_u32 v%d, v1, 4, s7' % T)
            a('s_lshl_b32 s7, s%d, 5' % sTl)
            a('s_add_u32 s7, s7, 1024')
            a('v_and_b32 v%d, 3, v1' % (T + 2))
            a('v_lshl_add_u32 v%d, v%d, 3, s7' % (T + 1, T + 2))
            a('v_lshrrev_b32 v%d, 2, v3' % (T + 2))
            a('v_lshl_add_u32 v%d, v%d, 11, v%d' % (T + 1, T + 2, T + 1))
        else:
            a('s_lshl_b32 s7, s%d, 12' % sU)
            a('s_add_u32 s7, s7, 0x%x' % WS_YA)
            a('v_lshl_add_u32 v%d, v1, 4, s7' % T)
            a('s_lshr_b32 s7, s%d, 4' % sU)
            a('s_lshl_b32 s7, s7, 11')
            a('s_and_b32 s%d, s%d, 15' % (sO2, sU))
            a('s_lshl_b32 s%d, s%d, 6' % (sO2, sO2))
            a('s_add_u32 s7, s7, s%d' % sO2)
            a('v_lshl_add_u32 v%d, v1, 3, s7' % (T + 1))
        self.mpoll(n, lambda i: a('buffer_load_dwordx4 %s, v%d, %s, 0 offen offset:%d sc1' % (
            vr(Y + 4 * i, 4), T, srd(SRD_WS), i * 1024)), lambda i: Y + 4 * i + 2, MS, 0)
        self.stamp(28 + isb)
        for i in range(n):
            for k in range(4):
                a('v_dot2_f32_bf16 v%d, v%d, s%d, %s' % (
                    AC + k, Y + 4 * i + (k >> 1), sK + (k & 1), '0' if i == 0 else 'v%d' % (AC + k)))
        if not isb:
            self.ror('v_add_f32', range(AC, AC + 4), [8])
        a('v_permlane32_swap_b32 v%d, v%d' % (AC, AC + 2))
        a('v_permlane32_swap_b32 v%d, v%d' % (AC + 1, AC + 3))
        a('v_add_f32 v%d, v%d, v%d' % (AC, AC, AC + 2))
        a('v_add_f32 v%d, v%d, v%d' % (AC + 1, AC + 1, AC + 3))
        a('v_mov_b32 v%d, v%d' % (AC + 2, AC))
        a('v_mov_b32 v%d, v%d' % (AC + 3, AC + 1))
        a('v_permlane16_swap_b32 v%d, v%d' % (AC, AC + 2))
        a('v_permlane16_swap_b32 v%d, v%d' % (AC + 1, AC + 3))
        a('v_add_f32 v%d, v%d, v%d' % (AC, AC, AC + 2))
        a('v_add_f32 v%d, v%d, v%d' % (AC + 1, AC + 1, AC + 3))
        a('v_cvt_pk_bf16_f32 v%d, v%d, v%d' % (AC, AC, AC + 1))
        a('v_mov_b32 v%d, v%d' % (AC + 1, AC))
        a('v_permlane32_swap_b32 v%d, v%d' % (AC, AC + 1))
        a('s_mov_b64 exec, %s' % ('0xffff' if isb else '0xff'))
        a('buffer_store_dwordx2 %s, v%d, %s, 0 offen' % (vr(AC, 2), T + 1, srd(SRD_C)))
        a('s_mov_b64 exec, -1')
        self.stamp(30 + isb)
        self.end()

    def end_red(self):
        self.a('s_branch L_RED')

    def q_gather(self, slot0, sB, sBb, bad, limit=None, sleep=0):
        a = self.a
        G, D = 48, 24
        sK = S_T + 10
        a('s_lshl_b32 s7, s%d, 15' % S_H)
        a('s_lshl_b32 s%d, s%d, 9' % (sBb, sB))
        a('s_add_u32 s7, s7, s%d' % sBb)
        a('s_add_u32 s7, s7, 0x%x' % (WS_QP + slot0 * 2048))
        a('v_and_b32 v20, 31, v1')
        a('v_lshl_add_u32 v7, v20, 4, s7')
        a('v_lshrrev_b32 v21, 5, v1')
        a('v_lshl_add_u32 v7, v21, 11, v7')
        a('v_add_u32 v22, 4096, v7')
        a('s_mul_i32 s7, s%d, 320' % sB)
        a('s_add_u32 s%d, s7, 0x%x' % (sBb, QBUF + (4 * 320 if slot0 else 0)))
        a('v_lshl_add_u32 v6, v20, 3, s%d' % sBb)
        a('v_lshl_add_u32 v6, v21, 2, v6')
        a('s_mov_b32 s%d, 0x3f80' % sK)
        a('s_mov_b32 s%d, 0x3f800000' % (sK + 1))

        def ld1(i):
            a('buffer_load_dwordx4 %s, v%d, %s, 0 offen sc1 nt' % (vr(G + 4 * i, 4), (7, 22)[i], srd(SRD_WS)))

        def run():
            LY = self.mpoll(2, ld1, lambda i: G + 4 * i + 2, 44, sleep, limit=limit, bad=bad)
            self.stamp(4)
            self.note(15, S_SPIN)
            for i in range(2):
                for k in range(4):
                    a('v_dot2_f32_bf16 v%d, v%d, s%d, %s' % (
                        D + k, G + 4 * i + (k >> 1), sK + (k & 1), '0' if i == 0 else 'v%d' % (D + k)))
            a('v_permlane32_swap_b32 v%d, v%d' % (D, D + 2))
            a('v_permlane32_swap_b32 v%d, v%d' % (D + 1, D + 3))
            a('v_add_f32 v%d, v%d, v%d' % (D, D, D + 2))
            a('v_add_f32 v%d, v%d, v%d' % (D + 1, D + 1, D + 3))
            a('v_cvt_pk_bf16_f32 v%d, v%d, v%d' % (D, D, D + 1))
            a('ds_write_b32 v6, v%d' % D)
            return LY
        return ld1, run

    def prologue(self):
        a, o = self.a, self.o
        sC4, sOff, sBb, sSt, sW = [S_T + 1 + i for i in range(5)]
        X, FR, D, PS = 128, 32, 24, 64
        VT, VQP = 8, 4
        a('s_and_b32 s%d, s%d, 3' % (sC4, S_CW))
        self.voff_tr(VT + 2, 0, 13)
        a('v_xor_b32 v%d, 0x80, v%d' % (VT + 3, VT + 2))
        a('s_lshl_b32 s%d, s%d, 20' % (sW, S_R))
        a('s_lshl_b32 s7, s%d, 8' % S_H)
        a('s_add_u32 s%d, s%d, s7' % (sW, sW))
        a('s_lshl_b32 s7, s%d, 18' % sC4)
        a('s_add_u32 s%d, s%d, s7' % (sW, sW))
        a('s_lshl_b32 s%d, s%d, 13' % (sSt, sC4))
        a('s_add_u32 s%d, s%d, 0x%x' % (sSt, sSt, L_WQ))
        a('v_and_b32 v%d, 3, v1' % VT)
        a('v_lshlrev_b32 v%d, 10, v%d' % (VT + 1, VT))
        a('v_lshl_add_u32 v%d, v2, 4, v%d' % (VT + 1, VT + 1))
        a('s_lshl_b32 s%d, s%d, 8' % (sOff, S_R))
        a('s_waitcnt lgkmcnt(0)')

        def wl(sr_, i0, i1):
            for i in range(i0, i1):
                a('s_mov_b32 m0, s%d' % sSt)
                a('s_add_u32 s%d, s%d, 1024' % (sSt, sSt))
                a('buffer_load_dwordx4 v%d, %s, s%d offen nt lds' % (VT + 2 + (i & 1), srd(sr_), sBb))
                a('s_add_u32 s%d, s%d, %d' % (sBb, sBb, 32768))

        def xl(m, px):
            self.mk_srd(SRD_A, px, 4096)
            for ks in range(4):
                a('buffer_load_dwordx4 %s, v%d, %s, s%d offen offset:%d' % (
                    vr(X + 16 * m + 4 * ks, 4), VT + 1, srd(SRD_A), sOff, ks * 64))
        self.mk_srd(SRD_B, P_BWQ, 4194304)
        a('s_mov_b32 s%d, s%d' % (sBb, sW))
        wl(SRD_B, 0, 8)
        xl(0, P_BX)
        self.stamp(0)
        a('s_barrier')
        self.mk_srd(SRD_WS, P_WS, WS_SIZE)
        a('s_lshl_b32 s7, s%d, 4' % S_H)
        a('s_add_u32 s7, s7, s%d' % S_R)
        a('s_lshl_b32 s7, s7, 4')
        a('s_add_u32 s7, s7, s%d' % sC4)
        a('s_lshl_b32 s7, s7, 7')
        a('s_add_u32 s7, s7, 0x%x' % WS_QP)
        a('v_lshl_add_u32 v%d, v%d, 9, s7' % (VQP, VT))
        a('v_lshl_add_u32 v%d, v2, 4, v%d' % (VQP, VQP))
        a('v_and_b32 v%d, 4, v1' % (VT + 4))
        a('v_lshl_add_u32 v%d, v%d, 4, v%d' % (VQP, VT + 4, VQP))
        a('v_add_u32 v%d, 16384, v%d' % (VQP + 1, VQP))
        if o.qpre:
            self.pretouch(VQP + 1, 16, '15')
        a('s_sub_u32 s%d, s%d, %d' % (sSt, sSt, L_WQ - L_UK + 8192))
        self.mk_srd(SRD_B, P_WQ, 4194304)
        a('s_mov_b32 s%d, s%d' % (sBb, sW))
        xl(1, P_AX)
        wl(SRD_B, 0, o.wqe)
        if o.yst & 4:
            a('s_lshl2_add_u32 s7, s%d, s%d' % (S_R, sC4))
            a('s_lshl_b32 s7, s7, 5')
            a('s_add_u32 s7, s7, s%d' % S_H)
            a('s_lshl_b32 s7, s7, 7')
            a('s_add_u32 s7, s7, 0x%x' % WS_YA)
            a('v_and_b32 v17, 7, v1')
            a('v_lshl_add_u32 v17, v17, 4, s7')
            a('v_lshrrev_b32 v18, 3, v1')
            a('v_lshl_add_u32 v17, v18, 16, v17')
            a('s_mov_b64 exec, 0xffffffff')
            a('buffer_store_dwordx4 v[0:3], v17, %s, 0 offen sc1' % srd(SRD_WS))
            a('s_mov_b64 exec, -1')
        if o.ldonly:
            wl(SRD_B, o.wqe, 8)
            a('s_endpgm')
        a('v_cmp_gt_u32 %s, 8, v3' % sp(S_MK))
        TA = 20
        a('v_bfe_u32 v%d, v1, 2, 2' % (TA + 1))
        a('v_lshl_add_u32 v%d, v2, 3, v%d' % (TA, TA + 1))
        a('s_lshl_b32 s7, s%d, 1' % sC4)
        a('v_xor_b32 v%d, s7, v%d' % (TA + 1, TA + 1))
        a('v_lshlrev_b32 v%d, 8, v%d' % (TA, TA))
        a('v_lshl_add_u32 v%d, v%d, 5, v%d' % (TA, TA + 1, TA))
        a('v_lshl_add_u32 v%d, v%d, 3, v%d' % (TA, VT, TA))
        a('v_add_u32 v%d, 0x%x, v%d' % (TA, L_UK, TA))
        a('v_xor_b32 v%d, 32, v%d' % (TA + 1, TA))
        a('v_xor_b32 v%d, 0x480, v%d' % (TA + 2, TA))
        a('v_xor_b32 v%d, 0x4a0, v%d' % (TA + 3, TA))

        def partial(m, cnt):
            self.lds_add(C_MX, VT + 6, VT + 7, drain=False)
            self.lds_wait(C_MX, cnt, VT + 6, VT + 7, sleep=0)
            self.stamp(2 + 4 * m)
            of = 0 if m else L_WQ - L_UK
            for ks in range(4):
                for t in range(2):
                    f = FR + 8 * ks + 4 * t
                    a('ds_read_b64_tr_b16 v[%d:%d], v%d offset:%d' % (f, f + 1, TA + t, of + ks * 8192))
                    a('ds_read_b64_tr_b16 v[%d:%d], v%d offset:%d' % (f + 2, f + 3, TA + 2 + t, of + ks * 8192))
                if ks == 2:
                    a('s_waitcnt lgkmcnt(8)')
            for ks in range(4):
                a('s_waitcnt lgkmcnt(%d)' % (12 - 4 * ks))
                for t in range(2):
                    a('v_mfma_f32_16x16x32_bf16 %s, %s, %s, %s' % (
                        vr(D + 4 * t, 4), vr(FR + 8 * ks + 4 * t, 4), vr(X + 16 * m + 4 * ks, 4),
                        '0' if ks == 0 else vr(D + 4 * t, 4)))
            if m == 0:
                a('s_memrealtime %s' % sp(S_MK3))
            self.lds_add(FREE + (2 if m else 3) * 4, VT + 6, VT + 7, drain=False)
            p = PS + 8 * m
            for t in range(2):
                a('v_cvt_pk_bf16_f32 v%d, v%d, v%d' % (p + 4 * t, D + 4 * t, D + 4 * t + 1))
                a('v_cvt_pk_bf16_f32 v%d, v%d, v%d' % (p + 4 * t + 1, D + 4 * t + 2, D + 4 * t + 3))
            for k in range(2):
                a('v_mov_b32_dpp v%d, v%d %s row_mask:0xf bank_mask:0x2' % (p + k, p + 4 + k, DPP_ID))
        a('s_waitcnt vmcnt(%d)' % ((2 if o.qpre else 0) + 4 + o.wqe + (1 if o.yst & 4 else 0)))
        partial(0, 4)
        qst = ['buffer_store_dwordx4 %s, v%d, %s, 0 offen' % (vr(PS + 8 * m, 4), VQP + 1 - m, srd(SRD_WS)) for m in range(2)]
        a('s_waitcnt lgkmcnt(0)')
        a('s_or_b32 s%d, s%d, s%d' % (S_MK3 + 1, S_MK3 + 1, S_XCC))
        a('v_mov_b32 v%d, s%d' % (PS + 2, S_MK3))
        a('v_mov_b32 v%d, s%d' % (PS + 3, S_MK3 + 1))
        a('s_mov_b64 exec, %s' % sp(S_MK))
        a(qst[0])
        a('s_mov_b64 exec, -1')
        self.stamp(3)
        wl(SRD_B, o.wqe, 8)
        self.lds_add(C_MX, VT + 6, VT + 7, drain=False)
        a('s_waitcnt vmcnt(0)')
        partial(1, 12)
        a('v_mov_b32 v%d, v%d' % (PS + 10, PS + 2))
        a('v_mov_b32 v%d, v%d' % (PS + 11, PS + 3))
        a('s_mov_b64 exec, %s' % sp(S_MK))
        a(qst[1])
        a('s_mov_b64 exec, -1')
        self.lds_add(C_MX, VT + 6, VT + 7, drain=False)
        self.group_check(VT + 2)
        self.get_nonce('a', VT + 4)
        self.lds_wait(LAND, 96, VT + 6, VT + 7, sleep=16)
        for m in range(2):
            a('v_mov_b32 v%d, s%d' % (PS + 8 * m + 2, S_NA))
            a('v_mov_b32 v%d, s%d' % (PS + 8 * m + 3, S_NA + 1))
        a('s_mov_b64 exec, %s' % sp(S_MK))
        self.st2(qst)
        a('s_mov_b64 exec, -1')
        a('s_waitcnt vmcnt(0)')
        self.lds_add(C_MX, VT + 6, VT + 7, drain=False)
        if o.fa:
            self.b_index(sOff)
            a('s_sub_u32 s%d, s%d, s%d' % (sOff, sOff, S_R))
            a('s_lshl1_add_u32 s7, s%d, s%d' % (sOff, S_R))
            a('s_lshl2_add_u32 s7, s7, s%d' % sC4)
            a('s_lshl_b32 s7, s7, 12')
            a('s_add_u32 s7, s7, 0x%x' % (WS_C1 + 6 * 32768))
            a('v_lshl_add_u32 v160, v1, 7, s7')
            a('s_mov_b64 exec, 0xffffffff')
            a('buffer_load_dword v160, v160, %s, 0 offen sc1%s' % (srd(SRD_WS), '' if o.c1w else ' nt'))
            a('s_mov_b64 exec, -1')
        self.stamp(7)
        a('s_branch L_ASVC')

    def q_abs(self):
        a, o = self.a, self.o
        a.label('L_QABS')
        sC4, sOff, sBb, sSt, sNn = [S_T + 1 + i for i in range(5)]
        sLim = S_T + 12
        X, D, G, UK = 128, 24, 48, 64
        VT, VQA = 8, 5
        a('s_and_b32 s%d, s%d, 3' % (sC4, S_CW))
        a('s_waitcnt lgkmcnt(0)')
        self.mk_srd(SRD_WS, P_WS, WS_SIZE)
        self.stamp(0)
        a('s_barrier')
        if o.ldonly:
            a('s_endpgm')
        a('s_cmp_ge_u32 s%d, 6' % S_R)
        a('s_cbranch_scc1 L_BATT')
        a('v_and_b32 v%d, 3, v1' % VT)
        a('v_lshlrev_b32 v%d, 15, v%d' % (VQA, VT))
        a('v_lshl_add_u32 v%d, v2, 3, v%d' % (VQA, VQA))
        a('v_lshrrev_b32 v%d, 2, v3' % (VT + 2))
        a('v_lshl_add_u32 v%d, v%d, 5, v%d' % (VQA, VT + 2, VQA))
        a('s_lshl_b32 s7, s%d, 1' % S_H)
        a('s_add_u32 s7, s7, s%d' % S_R)
        a('s_lshl_b32 s7, s7, 2')
        a('s_add_u32 s7, s7, s%d' % sC4)
        a('s_lshl_b32 s7, s7, 7')
        a('s_sub_u32 s7, s7, 2048')
        a('v_add_u32 v%d, s7, v%d' % (VQA, VQA))
        a('s_or_b32 s%d, s%d, s%d' % (S_NG + 1, S_NG + 1, S_XCC))
        a('s_add_u32 s%d, s%d, 0x10000' % (sLim, S_NG))
        a('s_addc_u32 s%d, s%d, 0' % (sLim + 1, S_NG + 1))
        LX = a.uniq('G2')

        def tbad(i, m):
            x = G + 4 * i + 2
            a('v_cmp_gt_u64 %s, %s, v[%d:%d]' % (sp(m), sp(S_NG), x, x + 1))
            a('v_cmp_le_u64 vcc, %s, v[%d:%d]' % (sp(sLim), x, x + 1))
            a('s_or_b64 %s, %s, vcc' % (sp(m), sp(m)))
        ld1, gather = self.q_gather(8, sC4, sBb, tbad, limit=(o.k1, LX))
        a('v_xor_b32 v%d, v3, v2' % (VT + 2))
        a('v_lshlrev_b32 v%d, 4, v%d' % (VT + 2, VT + 2))
        a('v_lshl_add_u32 v%d, v3, 8, v%d' % (VT + 2, VT + 2))
        a('s_lshl_b32 s7, s%d, 14' % sC4)
        a('s_add_u32 s7, s7, 0x%x' % L_UK)
        a('v_add_u32 v%d, s7, v%d' % (VT + 2, VT + 2))
        a('s_lshl_b32 s%d, s%d, 4' % (sNn, sC4))
        a('s_add_u32 s%d, s%d, 16' % (sNn, sNn))
        a('s_and_b32 s%d, s%d, 2' % (sSt, sC4))
        a('s_lshl_b32 s%d, s%d, 1' % (sSt, sSt))
        a('s_add_u32 s%d, s%d, 0x%x' % (sSt, sSt, FREE + 8))
        a('v_mul_u32_u24 v%d, 320, v%d' % (VT + 1, VT))
        a('v_lshl_add_u32 v%d, v2, 4, v%d' % (VT + 1, VT + 1))
        a('v_add_u32 v%d, 0x%x, v%d' % (VT + 1, QBUF + 4 * 320, VT + 1))
        self.lds_wait(LAND, o.gdel, VT + 4, VT + 5, sleep=1)
        self.stamp(3)
        LY = gather()

        def phase2():
            a.label(LX)
            a('s_mov_b64 exec, -1')
            self.get_nonce('a', VT + 4)

            def chk():
                a('s_mov_b64 %s, 0' % sp(S_MK4))
                for i in range(2):
                    x = G + 4 * i + 2
                    tbad(i, S_MK3)
                    a('v_cmp_ne_u64 vcc, %s, v[%d:%d]' % (sp(S_NA), x, x + 1))
                    a('s_and_b64 vcc, vcc, %s' % sp(S_MK3))
                    a('s_or_b64 %s, %s, vcc' % (sp(S_MK4), sp(S_MK4)))
            self.poll(lambda: [ld1(0), ld1(1)], chk, 1)
            a('s_branch %s' % LY)
        self.tail.append(phase2)
        self.lds_add(C_QB, G, G + 1, drain=False)
        self.lds_wait(LAND, 's%d' % sNn, VT + 4, VT + 5, sleep=0)
        for ks in range(4):
            a('v_xor_b32 v%d, 0x%x, v%d' % (VT + 3, ks << 6, VT + 2))
            for t in range(4):
                a('ds_read_b128 %s, v%d offset:%d' % (vr(UK + 16 * t + 4 * ks, 4), VT + 3, t * 4096))
        self.lds_add(('s', sSt), VT + 4, VT + 5, val=2, drain=False)
        self.lds_wait(C_QB, 4 + 16, VT + 4, VT + 5, sleep=0)
        for ks in range(4):
            a('ds_read_b128 %s, v%d offset:%d' % (vr(G + 4 * ks, 4), VT + 1, ks * 64))
        DQ = X
        for ks in range(4):
            a('s_waitcnt lgkmcnt(%d)' % (3 - ks))
            for t in range(4):
                a('v_mfma_f32_16x16x32_bf16 %s, %s, %s, %s' % (
                    vr(DQ + 4 * t, 4), vr(UK + 16 * t + 4 * ks, 4), vr(G + 4 * ks, 4),
                    '0' if ks == 0 else vr(DQ + 4 * t, 4)))
        for t in range(4):
            a('v_cvt_pk_bf16_f32 v%d, v%d, v%d' % (D + 2 * t, DQ + 4 * t, DQ + 4 * t + 1))
            a('v_cvt_pk_bf16_f32 v%d, v%d, v%d' % (D + 2 * t + 1, DQ + 4 * t + 2, DQ + 4 * t + 3))
        for t in range(1, 4):
            for k in range(2):
                a('v_mov_b32_dpp v%d, v%d %s row_mask:0xf bank_mask:0x%x' % (D + k, D + 2 * t + k, DPP_ID, 1 << t))
        a('buffer_store_dwordx2 %s, v%d, %s, 0 offen sc1' % (vr(D, 2), VQA, srd(SRD_WS)))
        self.lds_add(C_QB, G, G + 1, val=32, drain=False)
        self.stamp(5)

    def side(self):
        a, o = self.a, self.o
        a.label('L_SIDE')
        sC4, sOff, sBb, sBi, sX = S_T + 1, S_T + 2, S_T + 3, S_T + 4, S_T + 5
        sB, sStart, sN = S_T + 6, S_T + 7, S_T + 8
        LN, LC, LB, LP, LF, LG = [a.uniq(x) for x in ('NC', 'NQ', 'NB', 'NP', 'NF', 'NG')]
        self.zero_lds(10, 24)
        a('s_mov_b32 s%d, s%d' % (sC4, S_CW))
        for k in range(4):
            a('v_mov_b32 v%d, -1' % (28 + k))
        self.b_index(sBi)
        a('s_waitcnt lgkmcnt(0)')
        self.mk_srd(SRD_DBG, P_DBG, 256)
        a('s_or_b32 s7, s%d, s2' % S_CW)
        a('s_cbranch_scc1 %s' % LN)
        a('s_lshl_b64 %s, %s, 5' % (sp(S_NA), sp(S_NG)))
        a('s_or_b32 s%d, s%d, 0x80000000' % (S_NA + 1, S_NA + 1))
        a('v_mov_b32 v12, s%d' % S_NA)
        a('v_mov_b32 v13, s%d' % (S_NA + 1))
        a('s_mov_b64 exec, 1')
        a('buffer_store_dwordx2 v[12:13], v24, %s, 0 offen sc1' % srd(SRD_DBG))
        a('s_mov_b64 exec, -1')
        a.label(LN)
        self.mk_srd(SRD_WS, P_WS, WS_SIZE)
        self.stamp(0)
        if o.sb:
            a('s_barrier')
        a('s_cmp_lt_u32 s%d, 4' % S_R)
        a('s_cbranch_scc1 %s' % LB)
        a('s_cmp_ge_u32 s%d, 6' % S_R)
        a('s_cbranch_scc1 %s' % LC)
        a('s_cmp_lg_u32 s%d, 2' % S_CW)
        a('s_cbranch_scc1 %s' % LB)
        a('s_lshl_b32 s7, s%d, 1' % S_H)
        a('s_add_u32 s7, s7, s%d' % S_R)
        a('s_lshl_b32 s7, s7, 9')
        a('s_sub_u32 s7, s7, 2048')
        a('v_lshl_add_u32 v10, v3, 4, s7')
        a('v_lshl_add_u32 v10, v2, 15, v10')
        a('buffer_store_dwordx4 v[28:31], v10, %s, 0 offen sc1' % srd(SRD_WS))
        a('buffer_store_dwordx4 v[28:31], v10, %s, 0 offen offset:256 sc1' % srd(SRD_WS))
        a('s_branch %s' % LB)
        a.label(LC)
        a('s_lshl_b32 s%d, s%d, 2' % (sX, sBi))
        a('s_add_u32 s%d, s%d, s%d' % (sX, sX, S_CW))
        a('s_and_b32 s7, s%d, 31' % sX)
        a('s_lshl_b32 s7, s7, 13')
        a('s_lshr_b32 s%d, s%d, 3' % (sOff, sBi))
        a('s_lshl_b32 s%d, s%d, 10' % (sOff, sOff))
        a('s_add_u32 s7, s7, s%d' % sOff)
        a('s_add_u32 s7, s7, 0x%x' % WS_CT2)
        a('v_lshl_add_u32 v10, v1, 4, s7')
        a('buffer_store_dwordx4 v[28:31], v10, %s, 0 offen sc1' % srd(SRD_WS))
        a('s_lshl_b32 s7, s%d, 10' % sX)
        a('s_add_u32 s7, s7, 0x%x' % WS_YA)
        a('v_lshl_add_u32 v10, v1, 7, s7')
        a('s_lshl_b32 s%d, s%d, 9' % (sOff, sX))
        for ln, base in [(8 + k, WS_YB + 128 * k) for k in range(4)] + [(15 + k, WS_CD + 128 * k) for k in range(4)]:
            a('s_add_u32 s7, s%d, 0x%x' % (sOff, base))
            a('v_writelane_b32 v10, s7, %d' % ln)
        a('s_lshl_b32 s7, s%d, 7' % sX)
        a('s_add_u32 s7, s7, 0x%x' % WS_ML1)
        a('v_writelane_b32 v10, s7, 12')
        a('s_add_u32 s7, s7, 0x%x' % (WS_ML2 - WS_ML1))
        a('v_writelane_b32 v10, s7, 14')
        a('s_lshl_b32 s7, s%d, 4' % sX)
        a('s_add_u32 s7, s7, 0x%x' % WS_F1)
        a('v_writelane_b32 v10, s7, 13')
        a('s_mov_b64 exec, 0x%x' % o.tmask)
        if True:
            a('buffer_load_dword v15, v10, %s, 0 offen sc1' % srd(SRD_WS))
        a('s_mov_b64 exec, -1')
        if o.cpf:
            a('s_getpc_b64 %s' % sp(S_MK))
            a.label('L_PC')
            a('s_and_b32 s7, s%d, 31' % sX)
            a('s_mul_i32 s7, s7, 1280')
            a('v_lshl_add_u32 v10, v1, 7, s7')
            a('v_min_u32 v10, L_END-%s_kernel, v10' % NAME)
            a('s_sub_u32 s%d, s%d, L_PC-%s_kernel' % (S_MK, S_MK, NAME))
            a('s_subb_u32 s%d, s%d, 0' % (S_MK + 1, S_MK + 1))
            a('v_mov_b32 v11, s%d' % (S_MK + 1))
            a('v_add_co_u32 v10, vcc, s%d, v10' % S_MK)
            a('v_addc_co_u32 v11, vcc, 0, v11, vcc')
            a('s_mov_b64 exec, 0x3ff')
            a('global_load_dword v15, v[10:11], off')
            a('s_mov_b64 exec, -1')
        a.label(LB)
        if not o.sb:
            a('s_barrier')
        if o.ldonly:
            a('s_endpgm')
        a('s_cmp_lg_u32 s%d, 0' % S_CW)
        a('s_cbranch_scc1 %s' % LF)
        self.fetch_nonce(11, 24)
        a.label(LF)
        a('s_cmp_lg_u32 s%d, 1' % S_CW)
        a('s_cbranch_scc1 %s' % LP)
        a('s_lshl_b32 s%d, s%d, 7' % (sX, S_H))
        a('s_add_u32 s%d, s%d, 0x%x' % (sX, sX, WS_GF))
        a('s_lshr_b32 s7, s%d, 3' % sBi)
        a('s_lshl_b32 s7, s7, 7')
        a('s_add_u32 s7, s7, 0x%x' % WS_XF)
        a('s_and_b32 s%d, s%d, 7' % (sOff, sBi))
        a('s_cmp_lt_u32 s%d, 6' % S_R)
        a('s_cselect_b32 s7, s%d, s7' % sX)
        a('s_cselect_b32 s%d, s%d, s%d' % (sOff, S_R, sOff))
        a('v_lshl_add_u32 v11, v1, 3, s7')
        a('s_sleep %d' % o.adel)
        a('s_memrealtime %s' % sp(S_MK3))
        a('s_waitcnt lgkmcnt(0)')
        a('s_or_b32 s%d, s%d, s%d' % (S_MK3 + 1, S_MK3 + 1, S_XCC))
        a('v_mov_b32 v12, s%d' % S_MK3)
        a('v_mov_b32 v13, s%d' % (S_MK3 + 1))
        a('s_lshl_b64 exec, 1, s%d' % sOff)
        a('buffer_store_dwordx2 v[12:13], v11, %s, 0 offen' % srd(SRD_WS))
        a('s_mov_b64 exec, -1')
        a.label(LP)
        self.stamp(1)
        a('s_cmp_ge_u32 s%d, 6' % S_R)
        a('s_cbranch_scc1 L_BATT')
        a('s_cmp_lt_u32 s%d, 4' % S_R)
        a('s_cbranch_scc1 %s' % LG)
        a('s_cmp_lg_u32 s%d, 2' % S_CW)
        a('s_cbranch_scc1 %s' % LG)
        a('s_lshl_b32 s7, s%d, 4' % S_H)
        a('s_add_u32 s7, s7, s%d' % S_R)
        a('s_lshl_b32 s7, s7, 3')
        a('s_add_u32 s7, s7, 0x%x' % (WS_FLAG - 32))
        a('v_mov_b32 v11, s7')
        a('s_waitcnt vmcnt(0)')
        self.stamp(10)
        self.lds_add(C_QB, 12, 13, val=16, drain=False)
        self.get_nonce('a', 16)
        a('s_mov_b64 exec, 1')
        a('buffer_store_dwordx2 v[18:19], v11, %s, 0 offen sc1' % srd(SRD_WS))
        a('s_mov_b64 exec, -1')
        a.label(LG)
        self.load_tab()
        self.wave_tab(sC4, sB, sStart, sN)
        sLim = S_T + 12
        a('s_or_b32 s%d, s%d, s%d' % (S_NG + 1, S_NG + 1, S_XCC))
        a('s_add_u32 s%d, s%d, 0x10000' % (sLim, S_NG))
        a('s_addc_u32 s%d, s%d, 0' % (sLim + 1, S_NG + 1))

        def qbad(i, m):
            x = 48 + 4 * i + 2
            a('v_cmp_gt_u64 %s, %s, v[%d:%d]' % (sp(m), sp(S_NG), x, x + 1))
            a('v_cmp_le_u64 vcc, %s, v[%d:%d]' % (sp(sLim), x, x + 1))
            a('s_or_b64 %s, %s, vcc' % (sp(m), sp(m)))
            a('v_cmp_ne_u64 vcc, %s, v[%d:%d]' % (sp(S_NA), x, x + 1))
            a('s_and_b64 %s, %s, vcc' % (sp(m), sp(m)))
        ld1, gather = self.q_gather(0, sB, sBb, qbad, sleep=4)
        self.get_nonce('a', 16)
        a('s_cmp_lt_u32 s%d, 4' % S_R)
        a('s_cselect_b32 s%d, 16, 148' % sX)
        a('s_cselect_b32 s7, 0, %d' % ((C_QB - C_MX) & 0xffffffff))
        a('s_add_u32 s7, s7, 0x%x' % C_MX)
        self.lds_wait('s7', 's%d' % sX, 12, 13, sleep=4)
        a('s_sleep %d' % o.gdela)
        gather()

    def a_att(self):
        a, o = self.a, self.o
        a.label('L_AATT')
        sC4, sOff, sBb = S_T + 1, S_T + 2, S_T + 3
        sB, sStart, sN = S_T + 6, S_T + 7, S_T + 8
        sSlot, sThr, sI, sC, sTot, sThV = [S_T + 9 + i for i in range(6)]
        Q, KF, D, ACC, AD, P = 16, 32, 64, 72, 104, 112
        VK0, VV0, VSW, VPR, T, VML, ML = 4, 5, 6, 7, 8, 12, 116
        a('v_lshl_add_u32 v%d, v2, 4, s%d' % (T, sBb))
        a('s_waitcnt lgkmcnt(0)')
        for ks in range(4):
            a('ds_read_b128 %s, v%d offset:%d' % (vr(Q + 4 * ks, 4), T, ks * 64))
        a('v_xor_b32 v%d, v3, v2' % VK0)
        a('v_lshlrev_b32 v%d, 4, v%d' % (VK0, VK0))
        a('v_lshl_add_u32 v%d, v3, 8, v%d' % (VK0, VK0))
        a('v_lshrrev_b32 v%d, 2, v1' % (T + 1))
        a('v_and_b32 v%d, 7, v%d' % (VV0, T + 1))
        a('v_lshlrev_b32 v%d, 5, v%d' % (VV0, VV0))
        a('v_lshl_add_u32 v%d, v%d, 8, v%d' % (VV0, T + 1, VV0))
        a('v_and_b32 v%d, 3, v1' % (T + 2))
        a('v_lshl_add_u32 v%d, v%d, 3, v%d' % (VV0, T + 2, VV0))
        a('s_lshl_b32 s7, s%d, 10' % sC4)
        a('s_add_u32 s7, s7, 0x%x' % SCB)
        a('v_lshl_add_u32 v%d, v2, 4, s7' % VSW)
        a('v_cmp_eq_u32 %s, 0, v3' % sp(S_MK))
        a('s_mov_b32 s%d, 0x%x' % (sC, f32bits(SCALE_LOG2E)))
        a('s_cmp_ge_u32 s%d, 4' % S_R)
        a('s_cselect_b32 s%d, %d, %d' % (sTot, (K0E + self.NE) % NSLOT, (K0A + self.NA) % NSLOT))
        a('s_cselect_b32 s%d, %d, %d' % (sSlot, K0E, K0A))
        a('s_cselect_b32 s%d, %d, %d' % (sThr, (PWE + 8 * K0E + 8) // 8, (PWA + 8 * K0A + 8) // 8))
        a('s_cselect_b32 s%d, %d, %d' % (sThV, self.NE, self.NA))
        a('s_add_u32 s%d, s%d, s%d' % (sThr, sThr, sC4))
        a('s_add_u32 s%d, s%d, s%d' % (sThV, sThV, sThr))
        a('s_lshl_b32 s%d, s%d, 3' % (sThr, sThr))
        a('s_add_u32 s%d, s%d, s%d' % (sSlot, sSlot, sC4))
        a('s_cmp_ge_u32 s%d, %d' % (sSlot, NSLOT))
        a('s_cselect_b32 s7, %d, 0' % NSLOT)
        a('s_sub_u32 s%d, s%d, s7' % (sSlot, sSlot))
        a('s_mov_b32 s%d, s%d' % (sI, sN))

        def nxt():
            a('s_add_u32 s%d, s%d, 4' % (sSlot, sSlot))
            a('s_cmp_ge_u32 s%d, %d' % (sSlot, NSLOT))
            a('s_cselect_b32 s7, %d, 0' % NSLOT)
            a('s_sub_u32 s%d, s%d, s7' % (sSlot, sSlot))
            a('s_add_u32 s%d, s%d, 32' % (sThr, sThr))
            a('s_sub_u32 s%d, s%d, 1' % (sI, sI))
            a('s_cmp_lg_u32 s%d, 0' % sI)

        def free_addr():
            a('s_and_b32 s%d, s%d, 12' % (sOff, sSlot))
            a('s_add_u32 s%d, s%d, 0x%x' % (sOff, sOff, FREE))
        LK = a.uniq('AK')
        a.label(LK)
        a('s_lshl_b32 s7, s%d, 13' % sSlot)
        a('v_add_u32 v%d, s7, v%d' % (AD, VK0))
        for ks in range(1, 4):
            a('v_xor_b32 v%d, 0x%x, v%d' % (AD + ks, ks << 6, AD))
        free_addr()
        self.lds_wait(LAND, 's%d' % sThr, T, T + 1, sleep=2)
        for ks in range(4):
            for t in range(2):
                a('ds_read_b128 %s, v%d offset:%d' % (vr(KF + 8 * ks + 4 * t, 4), AD + ks, t * 4096))
        for ks in range(4):
            a('s_waitcnt lgkmcnt(%d)' % (6 - 2 * ks))
            for t in range(2):
                a('v_mfma_f32_16x16x32_bf16 %s, %s, %s, %s' % (
                    vr(D + 4 * t, 4), vr(KF + 8 * ks + 4 * t, 4), vr(Q + 4 * ks, 4), '0' if ks == 0 else vr(D + 4 * t, 4)))
        self.lds_add(('s', sOff), T, T + 1, drain=False)
        a('s_mov_b64 exec, %s' % sp(S_MK))
        for t in range(2):
            a('ds_write_b128 v%d, %s offset:%d' % (VSW, vr(D + 4 * t, 4), t * 64))
        a('s_mov_b64 exec, -1')
        a('v_add_u32 v%d, 128, v%d' % (VSW, VSW))
        nxt()
        a('s_cbranch_scc1 %s' % LK)
        self.stamp(6)
        S = KF
        a('v_lshrrev_b32 v%d, 2, v1' % T)
        a('v_cmp_gt_u32 %s, s%d, v%d' % (sp(S_MK2), sN, T))
        a('v_and_b32 v%d, 7, v%d' % (T, T))
        a('v_and_b32 v%d, 3, v1' % (T + 1))
        a('v_lshlrev_b32 v%d, 4, v%d' % (T + 1, T + 1))
        a('v_lshl_add_u32 v%d, v%d, 7, v%d' % (T + 2, T, T + 1))
        a('s_lshl_b32 s7, s%d, 10' % sC4)
        a('s_add_u32 s7, s7, 0x%x' % SCB)
        a('v_add_u32 v%d, s7, v%d' % (T + 2, T + 2))
        a('s_waitcnt lgkmcnt(0)')
        a('ds_read_b128 %s, v%d' % (vr(S, 4), T + 2))
        a('ds_read_b128 %s, v%d offset:64' % (vr(S + 4, 4), T + 2))
        a('s_lshl_b32 s7, s%d, 9' % sC4)
        a('s_add_u32 s7, s7, 0x%x' % PBA)
        a('v_lshl_add_u32 v%d, v%d, 6, v%d' % (T + 2, T, T + 1))
        a('v_add_u32 v%d, s7, v%d' % (T + 2, T + 2))
        a('v_lshl_add_u32 v%d, v2, 4, s7' % VPR)
        a('v_mov_b32 v%d, 0xff800000' % (T + 3))
        a('s_waitcnt lgkmcnt(0)')
        for k in range(8):
            a('v_cndmask_b32 v%d, v%d, v%d, %s' % (S + k, T + 3, S + k, sp(S_MK2)))
        M, Ls = D, D + 1
        a('v_max3_f32 v%d, v%d, v%d, v%d' % (M, S, S + 1, S + 2))
        a('v_max3_f32 v%d, v%d, v%d, v%d' % (M, M, S + 3, S + 4))
        a('v_max3_f32 v%d, v%d, v%d, v%d' % (M, M, S + 5, S + 6))
        a('v_max_f32 v%d, v%d, v%d' % (M, M, S + 7))
        self.ror('v_max_f32', [M], [1, 2, 4, 8])
        self.xlane_rows('v_max_f32', [M], T + 3)
        a('v_mul_f32 v%d, s%d, v%d' % (M, sC, M))
        for k in range(8):
            a('v_fma_f32 v%d, v%d, s%d, -v%d' % (S + k, S + k, sC, M))
        for k in range(8):
            a('v_exp_f32 v%d, v%d' % (S + k, S + k))
        for k in range(4):
            a('v_cvt_pk_bf16_f32 v%d, v%d, v%d' % (P + k, S + 2 * k, S + 2 * k + 1))
        a('s_mov_b64 exec, %s' % sp(S_MK2))
        a('ds_write_b128 v%d, %s' % (T + 2, vr(P, 4)))
        a('s_mov_b64 exec, -1')
        for st in (4, 2, 1):
            for k in range(st):
                a('v_add_f32 v%d, v%d, v%d' % (S + k, S + k, S + k + st))
        a('v_mov_b32 v%d, v%d' % (Ls, S))
        self.ror('v_add_f32', [Ls], [1, 2, 4, 8])
        self.xlane_rows('v_add_f32', [Ls], T + 3)
        self.verdict(T, T + 1)
        a('v_mov_b32 v%d, s%d' % (D + 2, S_NA))
        a('v_mov_b32 v%d, s%d' % (D + 3, S_NA + 1))
        a('s_lshl_b32 s7, s%d, 2' % S_H)
        a('s_add_u32 s7, s7, s%d' % sB)
        a('s_lshl_b32 s7, s7, 3')
        a('s_add_u32 s7, s7, s%d' % S_R)
        a('s_lshl_b32 s7, s7, 4')
        a('s_add_u32 s7, s7, 0x%x' % WS_MLA)
        a('v_mov_b32 v%d, s7' % T)
        a('s_mov_b64 exec, 1')
        self.st2(['buffer_store_dwordx4 %s, v%d, %s, 0 offen' % (vr(D, 4), T, srd(SRD_WS))])
        a('s_mov_b64 exec, -1')
        a('s_and_b32 s7, s7, -128')
        a('v_lshl_add_u32 v%d, v1, 4, s7' % VML)
        a('v_or_b32 v%d, 1, v%d' % (D + 6, D + 2))
        a('v_mov_b32 v%d, v%d' % (D + 7, D + 3))
        a('v_mov_b32 v%d, 0xff800000' % ML)
        a('v_mov_b32 v%d, 0' % (ML + 1))
        for k in range(32):
            a('v_mov_b32 v%d, 0' % (ACC + k))
        a('s_lshl_b32 s7, s%d, 4' % S_H)
        a('s_add_u32 s7, s7, s%d' % S_R)
        a('s_lshl_b32 s7, s7, 2')
        a('s_add_u32 s7, s7, s%d' % sB)
        a('s_lshl_b32 s7, s7, 9')
        a('s_add_u32 s7, s7, 0x%x' % WS_QP)
        a('v_lshl_add_u32 v%d, v1, 4, s7' % VSW)
        LE = a.uniq('AE')
        a('s_cmp_lt_u32 s%d, 4' % S_R)
        a('s_cbranch_scc1 %s' % LE)
        self.pretouch(VSW, 13, '0x01010101')
        a.label(LE)
        a('s_add_u32 s%d, s%d, s%d' % (sSlot, sTot, sC4))
        a('s_lshl_b32 s%d, s%d, 3' % (sThr, sThV))
        a('s_cmp_ge_u32 s%d, %d' % (sSlot, NSLOT))
        a('s_cselect_b32 s7, %d, 0' % NSLOT)
        a('s_sub_u32 s%d, s%d, s7' % (sSlot, sSlot))
        a('s_mov_b32 s%d, s%d' % (sI, sN))
        self.stamp(7)
        LV = a.uniq('AV')
        a.label(LV)
        a('s_lshl_b32 s7, s%d, 13' % sSlot)
        a('v_add_u32 v%d, s7, v%d' % (AD, VV0))
        for t in range(1, 8):
            a('v_xor_b32 v%d, 0x%x, v%d' % (AD + t, t << 5, AD))
        free_addr()
        a('ds_read_b128 %s, v%d' % (vr(P, 4), VPR))
        a('v_add_u32 v%d, 64, v%d' % (VPR, VPR))
        LW, LWB = a.uniq('AW'), a.uniq('AWB')
        a('s_cmp_le_u32 s%d, 2' % sI)
        a('s_cbranch_scc1 %s' % LW)
        a.label(LWB)

        def weight():
            L1 = a.uniq('AX')
            mll = 'buffer_load_dwordx4 %s, v%d, %s, 0 offen sc1 nt' % (vr(ML, 4), VML, srd(SRD_WS))
            a.label(LW)
            a('s_mov_b64 exec, 0x3f')
            a('s_cmp_eq_u32 s%d, 1' % sI)
            a('s_cbranch_scc1 %s' % L1)
            a(mll)
            a('s_mov_b64 exec, -1')
            a('s_branch %s' % LWB)
            a.label(L1)
            self.poll(lambda: a(mll), lambda: self.tags_bad([ML + 2], S_NA), 2, first_issued=True)
            a('s_mov_b64 exec, -1')
            a('v_mov_b32 v%d, v%d' % (ML + 2, ML))
            self.ror('v_max_f32', [ML + 2], [1, 2, 4, 8])
            a('v_sub_f32 v%d, v%d, v%d' % (ML, ML, ML + 2))
            a('v_sub_f32 v%d, v%d, v%d' % (ML + 3, D, ML + 2))
            a('v_exp_f32 v%d, v%d' % (ML, ML))
            a('v_exp_f32 v%d, v%d' % (ML + 3, ML + 3))
            a('v_mul_f32 v%d, v%d, v%d' % (ML, ML, ML + 1))
            self.ror('v_add_f32', [ML], [1, 2, 4, 8])
            a('v_rcp_f32 v%d, v%d' % (ML, ML))
            a('v_mul_f32 v%d, v%d, v%d' % (ML, ML, ML + 3))
            a('v_readfirstlane_b32 s%d, v%d' % (sC, ML))
            a('s_cmp_lt_u32 s%d, 4' % S_R)
            a('s_cselect_b32 s7, 20, 0')
            self.lds_wait(C_MX, 's7', T, T + 1, sleep=1)
            a('s_branch %s' % LWB)
        self.tail.append(weight)
        self.lds_wait(LAND, 's%d' % sThr, T, T + 1, sleep=1)
        for t in range(8):
            if t == 7:
                a('s_waitcnt lgkmcnt(12)')
                a('v_mfma_f32_16x16x32_bf16 %s, %s, %s, %s' % (vr(ACC, 4), vr(P, 4), vr(KF, 4), vr(ACC, 4)))
            a('ds_read_b64_tr_b16 v[%d:%d], v%d' % (KF + 4 * t, KF + 4 * t + 1, AD + t))
            a('ds_read_b64_tr_b16 v[%d:%d], v%d offset:4096' % (KF + 4 * t + 2, KF + 4 * t + 3, AD + t))
        for t in range(1, 8):
            a('s_waitcnt lgkmcnt(%d)' % (14 - 2 * t))
            a('v_mfma_f32_16x16x32_bf16 %s, %s, %s, %s' % (
                vr(ACC + 4 * t, 4), vr(P, 4), vr(KF + 4 * t, 4), vr(ACC + 4 * t, 4)))
        self.lds_add(('s', sOff), T, T + 1, drain=False)
        nxt()
        a('s_cbranch_scc1 %s' % LV)
        self.stamp(8)
        for i in range(4):
            a('v_mov_b32_dpp v%d, v%d %s row_mask:0x2 bank_mask:0xf' % (ACC + 4 * i, ACC + 16 + 4 * i, DPP_ID))
        for i in range(4):
            a('v_mul_f32 v%d, s%d, v%d' % (ACC + 4 * i, sC, ACC + 4 * i))
        a('v_cvt_pk_bf16_f32 v%d, v%d, v%d' % (D + 4, ACC, ACC + 4))
        a('v_cvt_pk_bf16_f32 v%d, v%d, v%d' % (D + 5, ACC + 8, ACC + 12))
        a('s_mov_b64 exec, 0xffffffff')
        self.st2(['buffer_store_dwordx4 %s, v%d, %s, 0 offen' % (vr(D + 4, 4), VSW, srd(SRD_WS))])
        a('s_mov_b64 exec, -1')
        self.lds_add(C_O, T, T + 1, drain=False)
        self.stamp(9)
        self.end()

    def a_svc(self):
        a, o = self.a, self.o
        a.label('L_ASVC')
        sC4, sOff, sX, MS = S_T + 1, S_T + 2, S_T + 3, S_T + 4
        FW, OPD, D1, ML, G, S = 32, 64, 96, 16, 112, 104
        VW, VOP, VOW, VOR, VY, T = 4, 5, 6, 7, 8, 24
        sK = S_T + 10
        w0, hfo = (2 * self.NA) % NSLOT, 16384
        a('v_bfe_u32 v%d, v1, 2, 2' % T)
        a('v_lshl_add_u32 v%d, v%d, 4, v2' % (VW, T))
        a('v_lshlrev_b32 v%d, 8, v%d' % (VW, VW))
        a('v_and_b32 v%d, 1, v2' % (T + 1))
        a('v_lshl_or_b32 v%d, v%d, 1, v%d' % (T, T, T + 1))
        a('s_lshl_b32 s7, s%d, 1' % sC4)
        a('v_xor_b32 v%d, s7, v%d' % (T, T))
        a('v_lshl_add_u32 v%d, v%d, 5, v%d' % (VW, T, VW))
        a('v_and_b32 v%d, 3, v1' % T)
        a('v_lshl_add_u32 v%d, v%d, 3, v%d' % (VW, T, VW))
        a('v_add_u32 v%d, 0x%x, v%d' % (VW, w0 * 8192, VW))
        a('v_xor_b32 v9, 32, v%d' % VW)

        def frags():
            for ks in range(4):
                for t in range(2):
                    f = FW + 16 * t + 4 * ks
                    a('ds_read_b64_tr_b16 v[%d:%d], v%d offset:%d' % (f, f + 1, (VW, 9)[t], ks * 1024))
                    a('ds_read_b64_tr_b16 v[%d:%d], v%d offset:%d' % (f + 2, f + 3, (VW, 9)[t], ks * 1024 + hfo))
        a('v_lshlrev_b32 v%d, 16, v%d' % (VY, T))
        a('v_and_b32 v%d, 4, v1' % (T + 2))
        a('v_lshl_add_u32 v%d, v%d, 4, v%d' % (VY, T + 2, VY))
        a('v_lshl_add_u32 v%d, v2, 4, v%d' % (VY, VY))
        a('s_lshl_b32 s7, s%d, 2' % S_R)
        a('s_add_u32 s7, s7, s%d' % sC4)
        a('s_lshl_b32 s7, s7, 5')
        a('s_add_u32 s7, s7, s%d' % S_H)
        a('s_lshl_b32 s7, s7, 7')
        a('s_add_u32 s7, s7, 0x%x' % WS_YA)
        a('v_add_u32 v%d, s7, v%d' % (VY, VY))
        a('v_cmp_gt_u32 %s, 8, v3' % sp(S_MK))
        a('s_lshl_b32 s7, s%d, 15' % S_H)
        a('s_lshl_b32 s%d, s%d, 9' % (sOff, sC4))
        a('s_add_u32 s7, s7, s%d' % sOff)
        a('s_add_u32 s7, s7, 0x%x' % WS_QP)
        a('v_and_b32 v%d, 31, v1' % (T + 2))
        a('v_lshl_add_u32 v%d, v%d, 4, s7' % (VOP, T + 2))
        a('v_lshrrev_b32 v%d, 5, v1' % (T + 2))
        a('v_lshl_add_u32 v%d, v%d, 11, v%d' % (VOP, T + 2, VOP))
        a('s_mul_i32 s7, s%d, 320' % sC4)
        a('s_add_u32 s7, s7, 0x%x' % OB)
        a('v_lshl_add_u32 v%d, v3, 4, s7' % VOW)
        a('v_lshl_add_u32 v%d, v%d, 3, v%d' % (VOW, T + 1, VOW))
        a('v_lshl_add_u32 v%d, v%d, 2, v%d' % (VOW, T + 2, VOW))
        a('v_mul_u32_u24 v%d, 320, v%d' % (VOR, T))
        a('v_lshl_add_u32 v%d, v2, 4, v%d' % (VOR, VOR))
        a('v_add_u32 v%d, 0x%x, v%d' % (VOR, OB, VOR))
        if o.yst & 1:
            for k in range(4):
                a('v_mov_b32 v%d, 0' % (D1 + k))
            a('s_mov_b64 exec, %s' % sp(S_MK))
            a('buffer_store_dwordx4 %s, v%d, %s, 0 offen sc1' % (vr(D1, 4), VY, srd(SRD_WS)))
            a('s_mov_b64 exec, -1')
        a('s_or_b64 %s, %s, 1' % (sp(S_NG), sp(S_NA)))
        a('v_mov_b32 v%d, s%d' % (ML + 2, S_NA))
        a('v_mov_b32 v%d, s%d' % (ML + 3, S_NA + 1))
        a('s_mov_b32 s%d, 4096' % sOff)
        a('s_mov_b32 s%d, 8192' % sX)
        a('s_mov_b32 s%d, 0x3f80' % sK)
        a('s_mov_b32 s%d, 0x3f800000' % (sK + 1))
        self.stamp(11)
        self.lds_wait(C_O, 4, T + 4, T + 5, sleep=2)
        a('s_setprio 2')
        self.stamp(12)

        def late():
            self.lds_wait(LAND, PWA + 16 * self.NA + 32, T + 4, T + 5, sleep=0)
            frags()
        self.mpoll(3, lambda i: a('buffer_load_dwordx4 %s, v%d, %s, %s offen sc1 nt' % (
            vr(G + 4 * i, 4), VOP, srd(SRD_WS), ('0', 's%d' % sOff, 's%d' % sX)[i])), lambda i: G + 4 * i + 2, MS, 0,
            non=S_NG, first=late)
        for i in range(3):
            for k in range(4):
                a('v_dot2_f32_bf16 v%d, v%d, s%d, %s' % (
                    S + k, G + 4 * i + (k >> 1), sK + (k & 1), '0' if i == 0 else 'v%d' % (S + k)))
        a('v_permlane32_swap_b32 v%d, v%d' % (S, S + 2))
        a('v_permlane32_swap_b32 v%d, v%d' % (S + 1, S + 3))
        a('v_add_f32 v%d, v%d, v%d' % (S, S, S + 2))
        a('v_add_f32 v%d, v%d, v%d' % (S + 1, S + 1, S + 3))
        a('v_cvt_pk_bf16_f32 v%d, v%d, v%d' % (S, S, S + 1))
        a('ds_write_b32 v%d, v%d' % (VOW, S))
        self.stamp(13)
        self.sync(T, T + 1, 4)
        for ks in range(4):
            a('ds_read_b128 %s, v%d offset:%d' % (vr(OPD + 4 * ks, 4), VOR, ks * 64))
        for ks in range(4):
            a('s_waitcnt lgkmcnt(%d)' % (3 - ks))
            for t in range(2):
                a('v_mfma_f32_16x16x32_bf16 %s, %s, %s, %s' % (
                    vr(D1 + 4 * t, 4), vr(FW + 16 * t + 4 * ks, 4), vr(OPD + 4 * ks, 4),
                    '0' if ks == 0 else vr(D1 + 4 * t, 4)))
        a('v_cvt_pk_bf16_f32 v%d, v%d, v%d' % (ML, D1, D1 + 1))
        a('v_cvt_pk_bf16_f32 v%d, v%d, v%d' % (ML + 1, D1 + 2, D1 + 3))
        a('v_cvt_pk_bf16_f32 v%d, v%d, v%d' % (S, D1 + 4, D1 + 5))
        a('v_cvt_pk_bf16_f32 v%d, v%d, v%d' % (S + 1, D1 + 6, D1 + 7))
        for k in range(2):
            a('v_mov_b32_dpp v%d, v%d %s row_mask:0xf bank_mask:0x2' % (ML + k, S + k, DPP_ID))
        a('s_mov_b64 exec, %s' % sp(S_MK))
        a('buffer_store_dwordx4 %s, v%d, %s, 0 offen sc1' % (vr(ML, 4), VY, srd(SRD_WS)))
        a('s_mov_b64 exec, -1')
        self.stamp(14)
        self.end_red()

    def e_svc(self):
        a, o = self.a, self.o
        a.label('L_ESVC')
        sC4, sOff, MS = S_T + 1, S_T + 2, S_T + 4
        FU, FO, X, T = 32, 96, 16, 160
        VML, VX, VCW, VCR, VOW, VOR, VY, W = 4, 5, 6, 7, 8, 9, 10, 11
        a('v_lshrrev_b32 v%d, 2, v1' % T)
        a('v_and_b32 v%d, 7, v%d' % (T + 1, T))
        a('s_lshl_b32 s7, s%d, 1' % sC4)
        a('v_xor_b32 v%d, s7, v%d' % (T + 1, T + 1))
        a('v_lshlrev_b32 v%d, 5, v%d' % (T + 1, T + 1))
        a('v_lshl_add_u32 v%d, v%d, 8, v%d' % (T + 1, T, T + 1))
        a('v_and_b32 v%d, 3, v1' % (T + 2))
        a('v_lshl_add_u32 v%d, v%d, 3, v%d' % (T + 1, T + 2, T + 1))
        a('v_lshrrev_b32 v%d, 5, v1' % (T + 3))
        a('s_lshl_b32 s7, s%d, 8' % sC4)
        a('s_lshl_b32 s%d, s%d, 10' % (sOff, S_H))
        a('s_add_u32 s7, s7, s%d' % sOff)
        a('s_add_u32 s%d, s7, 0x%x' % (sOff, WS_ML2))
        a('v_lshl_add_u32 v%d, v%d, 7, s%d' % (VML, T + 3, sOff))
        a('s_lshl_b32 s7, s7, 3')
        a('s_lshl_b32 s%d, s%d, 9' % (sOff, S_R))
        a('s_add_u32 s7, s7, s%d' % sOff)
        a('s_add_u32 s7, s7, 0x%x' % (WS_CT2 - 2048))
        a('v_and_b32 v%d, 31, v1' % (T + 4))
        a('v_lshl_add_u32 v%d, v%d, 4, s7' % (VX, T + 4))
        a('v_lshl_add_u32 v%d, v%d, 10, v%d' % (VX, T + 3, VX))
        a('s_mul_i32 s7, s%d, 576' % sC4)
        a('s_add_u32 s7, s7, 0x%x' % CLAT)
        a('v_lshrrev_b32 v%d, 2, v%d' % (T + 4, T + 4))
        a('v_lshl_add_u32 v%d, v%d, 6, s7' % (VCW, T + 4))
        a('v_lshl_add_u32 v%d, v%d, 4, v%d' % (VCW, T + 3, VCW))
        a('v_and_b32 v%d, 1, v1' % (T + 4))
        a('v_lshl_add_u32 v%d, v%d, 5, v%d' % (VCW, T + 4, VCW))
        a('v_and_b32 v%d, 2, v1' % (T + 4))
        a('v_lshl_add_u32 v%d, v%d, 2, v%d' % (VCW, T + 4, VCW))
        a('v_mul_u32_u24 v%d, 576, v%d' % (VCR, T + 2))
        a('v_lshl_add_u32 v%d, v2, 4, v%d' % (VCR, VCR))
        a('v_add_u32 v%d, 0x%x, v%d' % (VCR, CLAT, VCR))
        a('v_cmp_gt_u32 %s, 8, v3' % sp(S_MK))
        self.b_index(sOff)
        a('s_add_u32 s%d, s%d, 2' % (sOff, sOff))
        a('s_lshl_b32 s7, s%d, 11' % sOff)
        a('s_lshl_b32 s%d, s%d, 9' % (MS, sC4))
        a('s_add_u32 s7, s7, s%d' % MS)
        a('s_add_u32 s7, s7, 0x%x' % WS_CD)
        a('v_lshl_add_u32 v%d, v3, 6, s7' % VY)
        a('v_lshl_add_u32 v%d, v2, 4, v%d' % (VY, VY))
        a('s_lshr_b32 s7, s%d, 3' % sOff)
        a('s_lshl_b32 s7, s7, 7')
        a('s_add_u32 s7, s7, 0x%x' % WS_XF)
        a('v_and_b32 v%d, 7, v1' % (T + 4))
        a('v_lshl_add_u32 v%d, v%d, 3, s7' % (VOR, T + 4))
        self.get_nonce('a', X)
        self.lds_wait(LAND, PWE + 64, X, X + 1, sleep=4)
        a('v_xor_b32 v%d, 32, v%d' % (T + 2, T + 1))
        for ks in range(8):
            for tt in range(2):
                f = FU + 8 * ks + 4 * tt
                a('ds_read_b64_tr_b16 v[%d:%d], v%d offset:%d' % (f, f + 1, T + 1 + tt, ks * 8192))
                a('ds_read_b64_tr_b16 v[%d:%d], v%d offset:%d' % (f + 2, f + 3, T + 1 + tt, ks * 8192 + 4096))
            if ks & 1:
                a('s_waitcnt lgkmcnt(4)')
        self.lds_add(FREE, X, X + 1, lanes=2, drain=False)
        if o.c1w in (0, 3) and not o.fa:
            a('s_lshl_b32 s7, s%d, 2' % sOff)
            a('s_add_u32 s7, s7, s%d' % sC4)
            a('s_lshl_b32 s7, s7, 13')
            a('s_add_u32 s7, s7, 0x%x' % WS_C1)
            a('v_lshl_add_u32 v%d, v1, 7, s7' % VOW)
            a('buffer_load_dword v%d, v%d, %s, 0 offen sc1%s' % (VOW, VOW, srd(SRD_WS), '' if o.c1w else ' nt'))
        self.stamp(10)
        self.group_check(X)
        self.local(VOR, X, '0xff', 4, 8)
        ML = 12
        a('s_and_b32 s7, s%d, 7' % S_H)
        a('s_lshl_b32 s7, s7, 12')
        a('s_add_u32 s7, s7, 0x%x' % (WS_ML1 + 8))
        a('v_lshl_add_u32 v%d, v1, 9, s7' % VOR)
        a('s_mov_b32 s%d, 1' % S_MK2)
        a('s_mov_b32 s%d, 1' % (S_MK2 + 1))
        self.mpoll(1, lambda i: a('buffer_load_dwordx2 %s, v%d, %s, 0 offen offset:16 sc1' % (vr(ML, 2), VML, srd(SRD_WS))),
                   lambda i: ML, MS, 8, base=sp(S_MK2))
        LH = a.uniq('EH')
        a('s_cmp_eq_u32 s%d, 0' % S_UNI)
        a('s_cbranch_scc1 %s' % LH)
        self.mpoll(1, lambda i: a('buffer_load_dwordx2 %s, v%d, %s, 0 offen sc1 nt' % (vr(ML, 2), VOR, srd(SRD_WS))),
                   lambda i: ML, MS, 6, base='0xff')
        a.label(LH)
        if o.edel:
            a('s_sleep %d' % o.edel)
        self.stamp(11)
        a('s_setprio 2')

        def xl(i):
            a('buffer_load_dwordx4 %s, v%d, %s, 0 offen sc1' % (vr((X, ML)[i], 4), (VX, VML)[i], srd(SRD_WS)))

        def xbad(i, m):
            if i == 1:
                a('v_cmp_ne_u64 %s, %s, v[%d:%d]' % (sp(m), sp(S_NA), ML + 2, ML + 3))
                return
            a('v_max3_u32 v%d, v%d, v%d, v%d' % (T, X, X + 1, X + 2))
            a('v_max_u32 v%d, v%d, v%d' % (T, T, X + 3))
            a('v_cmp_eq_u32 %s, -1, v%d' % (sp(m), T))
        self.mpoll(2, xl, None, MS, 0, bad=xbad)
        self.stamp(12)
        U = X + 4
        a('v_mov_b32 v%d, v%d' % (T, ML))
        a('v_mov_b32 v%d, v%d' % (T + 1, ML))
        for k in range(4):
            a('v_lshlrev_b32 v%d, 16, v%d' % (U + 2 * k, X + k))
        a('v_permlane32_swap_b32 v%d, v%d' % (T, T + 1))
        a('v_max_f32 v%d, v%d, v%d' % (T, T, T + 1))
        a('v_sub_f32 v%d, v%d, v%d' % (W, ML, T))
        a('v_exp_f32 v%d, v%d' % (W, W))
        for k in range(4):
            a('v_and_b32 v%d, 0xffff0000, v%d' % (U + 2 * k + 1, X + k))
        a('v_mul_f32 v%d, v%d, v%d' % (T, W, ML + 1))
        a('v_mov_b32 v%d, v%d' % (T + 1, T))
        a('v_permlane32_swap_b32 v%d, v%d' % (T, T + 1))
        a('v_add_f32 v%d, v%d, v%d' % (T, T, T + 1))
        a('v_rcp_f32 v%d, v%d' % (T, T))
        a('v_mul_f32 v%d, v%d, v%d' % (W, W, T))
        for k in range(8):
            a('v_mul_f32 v%d, v%d, v%d' % (U + k, U + k, W))
        for k in range(4):
            a('v_permlane32_swap_b32 v%d, v%d' % (U + k, U + 4 + k))
        for k in range(4):
            a('v_add_f32 v%d, v%d, v%d' % (U + k, U + k, U + 4 + k))
        a('v_cvt_pk_bf16_f32 v%d, v%d, v%d' % (U, U, U + 1))
        a('v_cvt_pk_bf16_f32 v%d, v%d, v%d' % (U + 1, U + 2, U + 3))
        a('ds_write_b64 v%d, v[%d:%d]' % (VCW, U, U + 1))
        self.sync(T, T + 1, 4)
        AC = X + 8
        for ks in range(8):
            a('ds_read_b128 %s, v%d offset:%d' % (vr(FO + 4 * ks, 4), VCR, ks * 64))
        a('v_mov_b32 v%d, s%d' % (X + 2, S_NA))
        a('v_mov_b32 v%d, s%d' % (X + 3, S_NA + 1))
        for ks in range(8):
            a('s_waitcnt lgkmcnt(%d)' % (7 - ks))
            for tt in range(2):
                a('v_mfma_f32_16x16x32_bf16 %s, %s, %s, %s' % (
                    vr(AC + 4 * tt, 4), vr(FU + 8 * ks + 4 * tt, 4), vr(FO + 4 * ks, 4),
                    '0' if ks == 0 else vr(AC + 4 * tt, 4)))
        for tt in range(2):
            a('v_cvt_pk_bf16_f32 v%d, v%d, v%d' % (X + 4 * tt, AC + 4 * tt, AC + 4 * tt + 1))
            a('v_cvt_pk_bf16_f32 v%d, v%d, v%d' % (X + 4 * tt + 1, AC + 4 * tt + 2, AC + 4 * tt + 3))
        for k in range(2):
            a('v_mov_b32_dpp v%d, v%d %s row_mask:0xf bank_mask:0x2' % (X + k, X + 4 + k, DPP_ID))
        a('s_mov_b64 exec, %s' % sp(S_MK))
        self.st2(['buffer_store_dwordx4 %s, v%d, %s, 0 offen' % (vr(X, 4), VY, srd(SRD_WS))])
        a('s_mov_b64 exec, -1')
        self.stamp(13)
        self.end_red()

    def b_att(self):
        a, o = self.a, self.o
        a.label('L_BATT')
        sBi, sKt, sHh, sOff, sC, sX, sThr, sSl, sSl2, sI, sAll, sE = [S_T + i for i in range(12)]
        Q, ACC, T = 32, 128, 160
        VA, VTM, VP, VPB, VAL, VQ = 4, 5, 6, 7, 8, 0
        VTR, MRUN, S4 = 9, 13, 16
        AD = ACC + 16
        sTb = S_T + 12
        self.b_index(sBi)
        a('s_lshr_b32 s%d, s%d, 1' % (sKt, S_CW))
        a('s_and_b32 s%d, s%d, 1' % (sHh, S_CW))
        a('s_mov_b32 s%d, 0x%x' % (sC, f32bits(SCALE_LOG2E)))
        a('v_lshlrev_b32 v%d, 10, v3' % VA)
        a('v_lshl_add_u32 v%d, v2, 8, v%d' % (VA, VA))
        a('v_lshl_add_u32 v%d, v3, 4, v%d' % (VQ, VA))
        a('s_lshl_b32 s7, s%d, 14' % sHh)
        a('s_add_u32 s7, s7, 0x%x' % QST)
        a('v_add_u32 v%d, s7, v%d' % (VQ, VQ))
        a('v_and_b32 v%d, 3, v1' % (T + 2))
        a('v_lshl_add_u32 v%d, v%d, 6, v%d' % (VA, T + 2, VA))
        a('v_bfe_u32 v%d, v1, 2, 2' % (T + 2))
        a('v_lshl_add_u32 v%d, v%d, 4, v%d' % (VA, T + 2, VA))
        a('s_lshl_b32 s7, s%d, 7' % S_CW)
        a('s_add_u32 s7, s7, 0x%x' % TML)
        a('v_lshl_add_u32 v%d, v3, 3, s7' % VTM)
        a('s_lshl_b32 s7, s%d, 10' % sKt)
        a('s_lshl_b32 s%d, s%d, 8' % (sOff, sHh))
        a('s_add_u32 s7, s7, s%d' % sOff)
        a('s_add_u32 s7, s7, 0x%x' % PBUF)
        a('v_lshl_add_u32 v%d, v3, 4, s7' % VP)
        a('v_lshrrev_b32 v%d, 5, v1' % (T + 3))
        a('v_lshl_add_u32 v%d, v%d, 9, v%d' % (VP, T + 3, VP))
        a('v_and_b32 v%d, 1, v2' % (T + 2))
        a('v_lshl_add_u32 v%d, v%d, 3, v%d' % (VP, T + 2, VP))
        a('v_lshlrev_b32 v%d, 4, v1' % VPB)
        a('v_add_u32 v%d, 0x%x, v%d' % (VPB, PBUF, VPB))
        a('v_and_b32 v%d, 31, v1' % (T + 2))
        a('v_lshlrev_b32 v%d, 3, v%d' % (VAL, T + 2))
        a('v_add_u32 v%d, 0x%x, v%d' % (VAL, TML, VAL))
        a('v_bfe_u32 v%d, v1, 2, 2' % (T + 2))
        a('v_lshl_add_u32 v%d, v%d, 3, v%d' % (T + 4, T + 3, T + 2))
        a('v_lshlrev_b32 v%d, 10, v%d' % (T + 4, T + 4))
        a('v_and_b32 v%d, 1, v1' % (T + 5))
        a('v_lshl_add_u32 v%d, v%d, 3, v%d' % (T + 4, T + 5, T + 4))
        a('s_lshl_b32 s7, s%d, 8' % sKt)
        a('v_add_u32 v%d, s7, v%d' % (T + 4, T + 4))
        a('v_bfe_u32 v%d, v1, 4, 1' % (T + 5))
        a('v_lshlrev_b32 v%d, 1, v%d' % (T + 5, T + 5))
        a('v_bfe_u32 v%d, v1, 1, 1' % T)
        a('v_or_b32 v%d, v%d, v%d' % (T + 5, T + 5, T))
        a('s_lshl_b32 s7, s%d, 3' % sHh)
        a('v_or_b32 v%d, s7, v%d' % (T + 5, T + 5))
        a('v_lshlrev_b32 v%d, 2, v%d' % (T + 2, T + 2))
        a('v_xor_b32 v%d, v%d, v%d' % (T + 5, T + 5, T + 2))
        a('v_lshlrev_b32 v%d, 1, v%d' % (T + 3, T + 3))
        a('v_xor_b32 v%d, v%d, v%d' % (T + 5, T + 5, T + 3))
        for hf in range(2):
            for ct in range(2):
                a('v_xor_b32 v%d, %d, v%d' % (T, (4 * ct) ^ hf, T + 5))
                a('v_lshl_add_u32 v%d, v%d, 4, v%d' % (VTR + 2 * hf + ct, T, T + 4))
                if hf:
                    a('v_add_u32 v%d, 0x1000, v%d' % (VTR + 2 * hf + ct, VTR + 2 * hf + ct))
        a('v_mov_b32 v%d, 0xff800000' % MRUN)
        a('s_mov_b64 %s, 0xffff' % sp(S_MK))
        a('s_lshl_b32 s7, s%d, 15' % sBi)
        a('s_lshl_b32 s%d, s%d, 12' % (sOff, S_CW))
        a('s_add_u32 s7, s7, s%d' % sOff)
        a('s_add_u32 s7, s7, 0x%x' % WS_C1)
        if o.yst & 2:
            a('s_and_b32 s%d, s%d, 3' % (sX, sBi))
            a('s_lshl3_add_u32 s%d, s%d, s%d' % (sX, sX, S_CW))
            a('s_lshl_b32 s%d, s%d, 4' % (sX, sX))
            a('s_lshr_b32 s%d, s%d, 2' % (sThr, sBi))
            a('s_add_u32 s%d, s%d, s%d' % (sX, sX, sThr))
            a('s_lshl_b32 s%d, s%d, 8' % (sX, sX))
            a('s_add_u32 s%d, s%d, 0x%x' % (sX, sX, WS_YB))
            a('v_lshl_add_u32 v%d, v1, 4, s%d' % (AD + 8, sX))
            a('s_mov_b64 exec, 0xffff')
            a('buffer_store_dwordx4 v[0:3], v%d, %s, 0 offen sc1' % (AD + 8, srd(SRD_WS)))
            a('s_mov_b64 exec, -1')
        a('v_lshl_add_u32 v%d, v1, 4, s7' % (AD + 8))
        for q in range(4 if o.c1w in (0, 2) else 0):
            a('buffer_store_dwordx4 v[0:3], v%d, %s, 0 offen offset:%d%s' % (
                AD + 8, srd(SRD_WS), q * 1024, ' sc1' if o.c1w else ''))
        a('s_lshl_b32 s7, s%d, 9' % S_CW)
        a('s_add_u32 s7, s7, 0x%x' % WS_FLAG)
        a('v_and_b32 v%d, 1, v1' % AD)
        a('v_lshl_add_u32 v%d, v%d, 3, s7' % (AD, AD))
        a('v_lshrrev_b32 v%d, 1, v1' % (AD + 1))
        a('v_lshl_add_u32 v%d, v%d, 7, v%d' % (AD, AD + 1, AD))
        a('s_lshr_b32 s7, s%d, 4' % sBi)
        a('s_lshl_b32 s7, s7, 15')
        a('s_add_u32 s7, s7, s%d' % sOff)
        a('v_lshl_add_u32 v%d, v1, 4, s7' % (AD + 1))
        a('s_and_b32 s7, s%d, 3' % S_CW)
        a('s_lshl_b32 s7, s7, 6')
        a('v_lshlrev_b32 v%d, 4, v1' % (AD + 2))
        a('v_xor_b32 v%d, s7, v%d' % (AD + 2, AD + 2))
        a('s_add_u32 s7, s%d, 0x%x' % (sOff, QST))
        a('v_add_u32 v%d, s7, v%d' % (AD + 2, AD + 2))
        for i in range(1, 4):
            a('v_xor_b32 v%d, 0x%x, v%d' % (AD + 2 + i, i << 4, AD + 2))
        SB = 96

        def ss(k):
            if not o.bprof:
                self.stampd(sI, -3, 28 + k)

        def fs(k):
            if o.bprof:
                self.stampd(sI, 40, 16 + k - 40 * o.bprof)

        def caddr(kk):
            a('s_bfe_u32 s7, s%d, 0x%x' % (sTb, 0x40000 | (4 * kk)))
            a('s_lshl_b32 s7, s7, 14')
            for v in range(4):
                a('v_add_u32 v%d, s7, v%d' % (20 + 4 * (kk % 3) + v, VTR + v))

        def cread(kk):
            for ct in range(2):
                c = SB + 8 * kk + 4 * ct
                a('ds_read_b64_tr_b16 v[%d:%d], v%d' % (c, c + 1, 20 + 4 * (kk % 3) + ct))
                a('ds_read_b64_tr_b16 v[%d:%d], v%d' % (c + 2, c + 3, 20 + 4 * (kk % 3) + 2 + ct))
        a('s_lshl_b32 s%d, s%d, 4' % (sThr, sKt))
        a('s_add_u32 s%d, s%d, %d' % (sThr, sThr, PWB + 16))
        a('s_mov_b32 s%d, %d' % (sAll, PWB + 64))
        a('s_mov_b32 s%d, 0x800080' % sE)
        a('s_lshl_b32 s%d, s%d, 2' % (sSl, sKt))
        a('s_or_b32 s%d, s%d, 0x40000' % (sSl, sSl))
        a('s_mov_b32 s%d, 0x%x' % (sTb, TSLOTS & 0xffffffff))
        a('s_mov_b32 s%d, 0x%x' % (sTb + 1, TSLOTS >> 32))
        a('s_mov_b32 s%d, 4' % sI)
        a('s_lshr_b32 s7, s%d, 3' % sBi)
        a('s_lshl_b32 s7, s7, 7')
        a('s_add_u32 s7, s7, 0x%x' % WS_XF)
        a('v_lshl_add_u32 v%d, v1, 3, s7' % (AD + 9))
        self.lds_wait(LAND, o.fs, T, T + 1, sleep=2)

        def preread():
            a('buffer_load_dwordx2 v[18:19], v%d, %s, 0 offen sc1 nt' % (AD + 9, srd(SRD_WS)))
            a('s_mov_b64 exec, -1')
            a('s_lshl_b32 s7, s%d, 14' % sKt)
            a('v_add_u32 v14, s7, v%d' % VA)
            self.lds_wait(LAND, PWB + 64, T, T + 1, sleep=2)
            for ks in range(16):
                a('v_xor_b32 v%d, 0x%x, v14' % (T + (ks & 1), ks << 4))
                a('ds_read_b128 %s, v%d' % (vr(Q + 4 * ks, 4), T + (ks & 1)))
            for kk in range(4):
                caddr(kk)
                cread(kk)
            self.lds_add(FREE, T + 2, T + 3, drain=False)
            self.stamp(6)
            self.get_nonce('a', T)
        self.mpoll(1, lambda i: a('buffer_load_dwordx2 v[16:17], v%d, %s, 0 offen sc1' % (AD, srd(SRD_WS))),
                   lambda i: 16, 44, 2, base='0xff', first=preread)
        self.local(AD + 9, 18, '0xff', 4, 8, issued=True)
        LXC = a.uniq('XC')
        a('s_cmp_ge_u32 s%d, 4' % S_CW)
        a('s_cbranch_scc1 %s' % LXC)
        a('s_and_b32 s7, s%d, 7' % sBi)
        a('s_lshl_b32 s7, s7, 2')
        a('s_add_u32 s7, s7, s%d' % S_CW)
        a('s_lshl_b32 s7, s7, 3')
        a('s_lshr_b32 s%d, s%d, 3' % (sX, sBi))
        a('s_add_u32 s7, s7, s%d' % sX)
        a('s_lshl_b32 s7, s7, 7')
        a('s_add_u32 s7, s7, 0x%x' % (WS_ML2 + 16))
        a('v_mov_b32 v%d, s7' % T)
        a('s_waitcnt vmcnt(0)')
        a('s_mov_b64 exec, 1')
        a('buffer_store_dwordx2 v[%d:%d], v%d, %s, 0 offen sc1' % (T + 2, T + 3, T, srd(SRD_WS)))
        a('s_mov_b64 exec, -1')
        a.label(LXC)
        self.lds_wait(LAND, o.qs, T, T + 1, sleep=1)
        self.stamp(7)

        def qbad(i, m):
            q = ACC + 4 * i
            a('v_max3_u32 v%d, v%d, v%d, v%d' % (T + i, q, q + 1, q + 2))
            a('v_max_u32 v%d, v%d, v%d' % (T + i, T + i, q + 3))
            a('v_cmp_eq_u32 %s, -1, v%d' % (sp(m), T + i))
        self.mpoll(4, lambda i: a('buffer_load_dwordx4 %s, v%d, %s, 0 offen offset:%d sc1' % (
            vr(ACC + 4 * i, 4), AD + 1, srd(SRD_WS), i * 1024)), None, 44, o.qsl, bad=qbad)
        if o.n0 < 11:
            self.lds_add(FREE + 8, T, T + 1, drain=False)
        for i in range(4):
            a('ds_write_b128 v%d, %s offset:%d' % (AD + 2 + i, vr(ACC + 4 * i, 4), i * 1024))
        for n in range(8):
            a('v_xor_b32 v%d, 0x%x, v%d' % (20 + n, n << 4, VQ))
        a('v_mov_b32 v%d, 0x%x' % (VQ, LAND))
        self.sync(T + 2, T + 3)
        self.stamp(8)
        for n in range(8):
            a('ds_read_b128 %s, v%d' % (vr(ACC + 4 * n, 4), 20 + n))
        for n in range(8):
            a('v_xor_b32 v%d, 0x80, v%d' % (20 + n, 20 + n))
        for ks in range(16):
            b = ACC + 4 * (ks & 7)
            a('s_waitcnt lgkmcnt(%d)' % min(7, 15 - ks))
            a('v_mfma_f32_16x16x32_bf16 %s, %s, %s, %s' % (
                vr(S4, 4), vr(Q + 4 * ks, 4), vr(b, 4), '0' if ks == 0 else vr(S4, 4)))
            for k in range(0, 4, 2):
                a('v_pk_mov_b32 v[%d:%d], v[%d:%d], v[%d:%d] op_sel:[0,1]' % (
                    Q + 4 * ks + k, Q + 4 * ks + k + 1, b + k, b + k + 1, b + k, b + k + 1))
            if ks < 8:
                a('ds_read_b128 %s, v%d' % (vr(b, 4), 20 + ks))
            else:
                for k in range(0, 4, 2):
                    a('v_pk_mov_b32 v[%d:%d], 0, 0' % (b + k, b + k + 1))
        self.lds_add(FREE + 4, T + 2, T + 3, drain=False)
        LM = a.uniq('BM')
        a('s_branch %s' % LM)
        LS = a.uniq('BS')
        a.label(LS)
        a('s_bfe_u32 s7, s%d, s%d' % (sTb, sSl))
        a('s_lshl_b32 s7, s7, 14')
        a('v_add_u32 v20, s7, v%d' % VA)
        for n in range(1, 8):
            a('v_xor_b32 v%d, 0x%x, v20' % (20 + n, n << 4))
        LK = a.uniq('BK')
        a('v_readfirstlane_b32 s%d, v15' % S_X)
        a('s_cmp_ge_u32 s%d, s%d' % (S_X, sThr))
        a('s_cbranch_scc1 %s' % LK)
        self.lds_wait(LAND, 's%d' % sThr, T + 2, T + 3, sleep=1)
        a.label(LK)
        ss(0)
        fs(0)
        for n in range(8):
            a('ds_read_b128 %s, v%d' % (vr(SB + 4 * n, 4), 20 + n))
        for n in range(8):
            a('v_xor_b32 v%d, 0x80, v%d' % (20 + n, 20 + n))
        for ks in range(16):
            a('s_waitcnt lgkmcnt(%d)' % min(7, 15 - ks))
            a('v_mfma_f32_16x16x32_bf16 %s, %s, %s, %s' % (
                vr(S4, 4), vr(SB + 4 * (ks & 7), 4), vr(Q + 4 * ks, 4), '0' if ks == 0 else vr(S4, 4)))
            if ks < 8:
                a('ds_read_b128 %s, v%d' % (vr(SB + 4 * ks, 4), 20 + ks))
            if ks in (9, 11, 13):
                caddr((ks - 9) // 2)
        LA = a.uniq('BA')
        a('s_cmp_ge_u32 s%d, s%d' % (S_X, sAll))
        a('s_cbranch_scc1 %s' % LA)
        self.lds_wait(LAND, 's%d' % sAll, T + 2, T + 3, sleep=1)
        a.label(LA)
        for kk in range(3):
            cread(kk)
        caddr(3)
        cread(3)
        self.lds_add(FREE, T + 2, T + 3, drain=False)
        a.label(LM)
        fs(1)
        a('v_max3_f32 v%d, v%d, v%d, v%d' % (T, S4, S4 + 1, S4 + 2))
        a('v_max_f32 v%d, v%d, v%d' % (T, T, S4 + 3))
        self.xlane_rows('v_max_f32', [T], T + 1)
        a('v_mul_f32 v%d, s%d, v%d' % (T, sC, T))
        a('v_ceil_f32 v%d, v%d' % (T, T))
        for k in range(4):
            a('v_fma_f32 v%d, v%d, s%d, -v%d' % (S4 + k, S4 + k, sC, T))
        for k in range(4):
            a('v_exp_f32 v%d, v%d' % (S4 + k, S4 + k))
        for k in range(2):
            a('v_cvt_pk_bf16_f32 v%d, v%d, v%d' % (T + 2 + k, S4 + 2 * k, S4 + 2 * k + 1))
        a('ds_write_b64 v%d, v[%d:%d]' % (VP, T + 2, T + 3))
        a('s_mov_b64 exec, %s' % sp(S_MK))
        a('ds_write_b32 v%d, v%d' % (VTM, T))
        a('s_add_u32 s%d, s%d, 8' % (S_SY, S_SY))
        self.lds_add(C_SY, T + 4, T + 5, drain=False)
        a('v_add_f32 v%d, v%d, v%d' % (S4, S4, S4 + 1))
        a('v_add_f32 v%d, v%d, v%d' % (S4 + 2, S4 + 2, S4 + 3))
        a('v_add_f32 v%d, v%d, v%d' % (T + 1, S4, S4 + 2))
        self.xlane_rows('v_add_f32', [T + 1], S4)
        a('s_mov_b64 exec, %s' % sp(S_MK))
        a('ds_write_b32 v%d, v%d offset:4' % (VTM, T + 1))
        a('s_mov_b64 exec, 1')
        a('ds_add_u32 v%d, v%d offset:%d' % (T + 4, T + 5, C_MX - C_SY))
        a('s_mov_b64 exec, -1')
        fs(2)
        self.lds_wait(C_SY, 's%d' % S_SY, T + 4, T + 5, sleep=0)
        ss(1)
        fs(3)
        PB = 16
        for kk in range(4):
            a('ds_read_b32 v%d, v%d offset:%d' % (T + kk, VAL, kk * 256))
        a('ds_read_b32 v15, v%d' % VQ)
        for kk in range(4):
            a('ds_read_b128 %s, v%d offset:%d' % (vr(PB + 4 * kk, 4), VPB, kk * 1024))
        a('v_xor_b32 v%d, 0x%x, v%d' % (VP, PBUF ^ (PBUF + 4096), VP))
        a('v_xor_b32 v%d, 0x%x, v%d' % (VPB, PBUF ^ (PBUF + 4096), VPB))
        a('v_add_u32 v%d, 1024, v%d' % (VTM, VTM))
        a('v_add_u32 v%d, 1024, v%d' % (VAL, VAL))
        a('s_waitcnt lgkmcnt(5)')
        a('v_max3_f32 v14, v%d, v%d, v%d' % (MRUN, T, T + 1))
        a('v_max3_f32 v14, v14, v%d, v%d' % (T + 2, T + 3))
        a('v_cmp_neq_f32 vcc, v14, v%d' % MRUN)
        for kk in range(4):
            a('v_sub_f32 v%d, v14, v%d' % (T + kk, T + kk))
        for kk in range(4):
            a('v_cvt_u32_f32 v%d, v%d' % (T + kk, T + kk))
        for kk in range(4):
            a('v_min_u32 v%d, 0xff, v%d' % (T + kk, T + kk))
        for kk in range(4):
            a('v_mul_u32_u24 v%d, s%d, v%d' % (T + kk, sE, T + kk))
        LR = a.uniq('BR')
        a('s_cbranch_vccz %s' % LR)
        a('v_sub_f32 v%d, v%d, v14' % (T + 4, MRUN))
        a('v_exp_f32 v%d, v%d' % (T + 4, T + 4))
        a('v_mov_b32 v%d, v14' % MRUN)
        for k in range(0, 32, 2):
            a('v_pk_mul_f32 v[%d:%d], v[%d:%d], v[%d:%d] op_sel_hi:[1,0]' % (
                ACC + k, ACC + k + 1, ACC + k, ACC + k + 1, T + 4, T + 5))
        a.label(LR)
        fs(4)
        for kk in range(4):
            a('s_waitcnt lgkmcnt(%d)' % (3 - kk))
            for k in range(4):
                a('v_pk_sub_u16 v%d, v%d, v%d clamp' % (PB + 4 * kk + k, PB + 4 * kk + k, T + kk))
            for ct in range(2):
                a('v_mfma_f32_32x32x16_bf16 %s, %s, %s, %s' % (
                    vr(ACC + 16 * ct, 16), vr(SB + 8 * kk + 4 * ct, 4), vr(PB + 4 * kk, 4), vr(ACC + 16 * ct, 16)))
        ss(2)
        fs(5)
        a('s_lshr_b64 %s, %s, 16' % (sp(sTb), sp(sTb)))
        a('s_add_u32 s%d, s%d, 64' % (sThr, sThr))
        a('s_add_u32 s%d, s%d, 64' % (sAll, sAll))
        a('s_sub_u32 s%d, s%d, 1' % (sI, sI))
        a('s_cmp_lg_u32 s%d, 0' % sI)
        a('s_cbranch_scc1 %s' % LS)
        sXg, sIdx = sSl, sSl2
        a('s_lshr_b32 s%d, s%d, 3' % (sXg, sBi))
        a('s_and_b32 s%d, s%d, 7' % (sIdx, sBi))
        a('s_lshl_b32 s7, s%d, 15' % sBi)
        a('s_lshl_b32 s%d, s%d, 12' % (sOff, S_CW))
        a('s_add_u32 s7, s7, s%d' % sOff)
        a('s_add_u32 s7, s7, 0x%x' % WS_C1)
        a('v_lshl_add_u32 v5, v1, 4, s7')
        a('v_mov_b32 v38, s%d' % S_NA)
        a('v_mov_b32 v39, s%d' % (S_NA + 1))
        L7 = a.uniq('B7')
        a('s_cmp_lg_u32 s%d, 7' % S_CW)
        a('s_cbranch_scc1 %s' % L7)
        a('v_lshrrev_b32 v45, 5, v1')
        a('v_lshl_add_u32 v45, v45, 11, v%d' % VAL)
        a('v_add_u32 v45, -4096, v45')
        self.lds_wait(C_MX, 32, 46, 47, sleep=0)
        for i in range(8):
            a('ds_read_b64 v[%d:%d], v45 offset:%d' % (48 + 2 * i, 49 + 2 * i, i * 256))
        a('s_lshl_b32 s7, s%d, 9' % sBi)
        a('s_add_u32 s7, s7, 0x%x' % WS_ML1)
        a('v_lshl_add_u32 v44, v1, 4, s7')
        a('v_mov_b32 v36, v%d' % MRUN)
        a('s_waitcnt lgkmcnt(0)')
        for i in range(8):
            a('v_sub_f32 v%d, v%d, v36' % (48 + 2 * i, 48 + 2 * i))
        for i in range(8):
            a('v_exp_f32 v%d, v%d' % (48 + 2 * i, 48 + 2 * i))
        a('v_mul_f32 v37, v48, v49')
        for i in range(1, 8):
            a('v_fmac_f32 v37, v%d, v%d' % (48 + 2 * i, 49 + 2 * i))
        a('v_mov_b32 v48, v37')
        a('v_permlane32_swap_b32 v37, v48')
        a('v_add_f32 v37, v37, v48')
        a('s_mov_b64 exec, 0xffffffff')
        self.st2(['buffer_store_dwordx4 v[36:39], v44, %s, 0 offen' % srd(SRD_WS)])
        a('s_mov_b64 exec, -1')
        a.label(L7)
        self.stamp(9)
        for ct in range(2):
            for k in range(2):
                r0, r1 = ACC + 16 * ct + 8 * k, ACC + 16 * ct + 8 * k + 4
                for e in range(4):
                    a('v_permlane32_swap_b32 v%d, v%d' % (r0 + e, r1 + e))
                d = 16 + 4 * (2 * ct + k)
                a('v_cvt_pk_bf16_f32 v%d, v%d, v%d' % (d, r0, r0 + 1))
                a('v_cvt_pk_bf16_f32 v%d, v%d, v%d' % (d + 1, r0 + 2, r0 + 3))
                a('v_cvt_pk_bf16_f32 v%d, v%d, v%d' % (d + 2, r1, r1 + 1))
                a('v_cvt_pk_bf16_f32 v%d, v%d, v%d' % (d + 3, r1 + 2, r1 + 3))
        a('s_lshl_b32 s7, s%d, 9' % sXg)
        a('s_lshl_b32 s%d, s%d, 6' % (sX, S_CW))
        a('s_add_u32 s7, s7, s%d' % sX)
        a('s_add_u32 s7, s7, 0x%x' % WS_F1)
        a('v_and_b32 v%d, 7, v1' % T)
        a('v_lshl_add_u32 v7, v%d, 3, s7' % T)
        a('s_lshl_b64 %s, 1, s%d' % (sp(S_MK3), sIdx))
        c1s = ['buffer_store_dwordx4 %s, v5, %s, 0 offen offset:%d' % (vr(16 + 4 * q, 4), srd(SRD_WS), q * 1024)
               for q in range(4)]
        if o.c1w in (1, 2):
            for x in c1s:
                a(x + ' sc1')
            c1s = []
        self.st2(c1s +
                 ['s_waitcnt vmcnt(0)', 's_mov_b64 exec, %s' % sp(S_MK3),
                  'buffer_store_dwordx2 v[38:39], v7, %s, 0 offen' % srd(SRD_WS), 's_mov_b64 exec, -1'])
        self.stamp(10)
        X1, ML, W, U = 48, 64, 80, 88
        a('s_lshl_b32 s7, s%d, 18' % sXg)
        a('s_add_u32 s7, s7, s%d' % sOff)
        a('s_lshl_b32 s%d, s%d, 6' % (sX, sIdx))
        a('s_add_u32 s7, s7, s%d' % sX)
        a('s_add_u32 s7, s7, 0x%x' % WS_C1)
        a('v_and_b32 v%d, 3, v1' % T)
        a('v_lshl_add_u32 v5, v%d, 4, s7' % T)
        a('v_bfe_u32 v%d, v1, 2, 3' % (T + 1))
        a('v_lshl_add_u32 v5, v%d, 9, v5' % (T + 1))
        a('v_lshrrev_b32 v%d, 5, v1' % (T + 2))
        a('v_lshl_add_u32 v5, v%d, 15, v5' % (T + 2))
        a('s_lshl_b32 s7, s%d, 12' % sXg)
        a('s_add_u32 s7, s7, s%d' % sX)
        a('s_add_u32 s7, s7, 0x%x' % WS_ML1)
        a('v_lshl_add_u32 v6, v%d, 4, s7' % T)
        a('v_lshl_add_u32 v6, v%d, 9, v6' % (T + 2))
        a('s_lshl_b32 s7, s%d, 15' % sIdx)
        a('s_lshl_b32 s%d, s%d, 10' % (sOff, sXg))
        a('s_add_u32 s7, s7, s%d' % sOff)
        a('s_lshl_b32 s%d, s%d, 7' % (sOff, S_CW))
        a('s_add_u32 s7, s7, s%d' % sOff)
        a('s_add_u32 s7, s7, 0x%x' % WS_CT2)
        a('v_lshl_add_u32 v8, v%d, 13, s7' % T)
        a('v_lshl_add_u32 v8, v%d, 4, v8' % (T + 1))
        a('v_lshl_add_u32 v8, v%d, 3, v8' % (T + 2))
        a('s_lshl_b32 s7, s%d, 7' % sXg)
        a('s_lshl_b32 s%d, s%d, 12' % (sOff, sIdx))
        a('s_add_u32 s7, s7, s%d' % sOff)
        a('s_add_u32 s7, s7, 0x%x' % WS_ML2)
        a('v_lshl_add_u32 v9, v%d, 10, s7' % T)

        self.mpoll(1, lambda i: a('buffer_load_dwordx2 v[40:41], v7, %s, 0 offen sc1 nt' % srd(SRD_WS)),
                   lambda i: 40, S_MK2, 0, base='0xff')

        def mll():
            for i in range(4):
                a('buffer_load_dwordx4 %s, v6, %s, 0 offen offset:%d sc1 nt' % (vr(ML + 4 * i, 4), srd(SRD_WS), i * 1024))
        mll()
        a('s_mov_b32 s%d, 0' % sOff)
        for i in range(4):
            a('buffer_load_dwordx4 %s, v5, %s, s%d offen sc1%s' % (vr(X1 + 4 * i, 4), srd(SRD_WS), sOff, '' if o.c1w else ' nt'))
            a('s_add_u32 s%d, s%d, 65536' % (sOff, sOff))
        LM, LMD = a.uniq('BL'), a.uniq('BLD')
        a('s_waitcnt vmcnt(4)')
        self.tags_bad(range(ML + 2, ML + 16, 4), S_NA)
        a('s_cbranch_scc1 %s' % LM)
        a.label(LMD)

        def mlretry():
            a.label(LM)
            self.poll(mll, lambda: self.tags_bad(range(ML + 2, ML + 16, 4), S_NA), 0)
            a('s_branch %s' % LMD)
        self.tail.append(mlretry)
        self.stamp(2)
        a('v_max3_f32 v36, v%d, v%d, v%d' % (ML, ML + 4, ML + 8))
        a('v_max_f32 v36, v36, v%d' % (ML + 12))
        a('v_mov_b32 v37, v36')
        a('v_permlane32_swap_b32 v36, v37')
        a('v_max_f32 v36, v36, v37')
        for i in range(4):
            a('v_sub_f32 v%d, v%d, v36' % (W + i, ML + 4 * i))
        for i in range(4):
            a('v_exp_f32 v%d, v%d' % (W + i, W + i))
        a('v_mul_f32 v37, v%d, v%d' % (W, ML + 1))
        for i in range(1, 4):
            a('v_fmac_f32 v37, v%d, v%d' % (W + i, ML + 4 * i + 1))
        a('v_mov_b32 v40, v37')
        a('v_permlane32_swap_b32 v37, v40')
        a('v_add_f32 v37, v37, v40')
        AC = 16
        for i in range(4):
            a('s_waitcnt vmcnt(%d)' % (3 - i))
            if i == 3:
                self.lds_add(C_L2, T, T + 1, drain=False)
            for k in range(4):
                a('v_lshlrev_b32 v%d, 16, v%d' % (U + 2 * k, X1 + 4 * i + k))
                a('v_and_b32 v%d, 0xffff0000, v%d' % (U + 2 * k + 1, X1 + 4 * i + k))
            for k in range(8):
                a('%s v%d, v%d, v%d' % ('v_mul_f32' if i == 0 else 'v_fmac_f32', AC + k, U + k, W + i))
        for k in range(4):
            a('v_permlane32_swap_b32 v%d, v%d' % (AC + k, AC + 4 + k))
        for k in range(4):
            a('v_add_f32 v%d, v%d, v%d' % (AC + k, AC + k, AC + 4 + k))
        a('v_cvt_pk_bf16_f32 v44, v%d, v%d' % (AC, AC + 1))
        a('v_cvt_pk_bf16_f32 v45, v%d, v%d' % (AC + 2, AC + 3))
        self.lds_wait(C_L2, 8, T, T + 1, sleep=0)
        a('buffer_store_dwordx2 v[44:45], v8, %s, 0 offen sc1' % srd(SRD_WS))
        L1 = a.uniq('BM2')
        a('s_cmp_lg_u32 s%d, 0' % S_CW)
        a('s_cbranch_scc1 %s' % L1)
        a('s_mov_b64 exec, 15')
        a('buffer_store_dwordx4 v[36:39], v9, %s, 0 offen sc1' % srd(SRD_WS))
        a('s_mov_b64 exec, -1')
        a.label(L1)
        self.lds_add(C_L2, T, T + 1, drain=False)
        self.stamp(11)
        FO, OP, G = 48, 80, 16
        CDB = PBUF
        a('s_lshr_b32 s%d, s%d, 2' % (sX, sBi))
        a('s_lshl_b32 s7, s%d, 13' % sX)
        a('s_lshl_b32 s%d, s%d, 10' % (sOff, S_CW))
        a('s_add_u32 s7, s7, s%d' % sOff)
        a('s_add_u32 s7, s7, 0x%x' % WS_CD)
        a('v_lshl_add_u32 v4, v1, 4, s7')
        a('v_lshrrev_b32 v%d, 2, v3' % T)
        a('v_mul_u32_u24 v5, 576, v%d' % T)
        a('v_and_b32 v%d, 3, v1' % T)
        a('v_lshl_add_u32 v5, v%d, 4, v5' % T)
        a('v_lshrrev_b32 v%d, 5, v1' % (T + 1))
        a('v_lshl_add_u32 v5, v%d, 6, v5' % (T + 1))
        a('v_and_b32 v%d, 1, v2' % (T + 1))
        a('v_lshl_add_u32 v5, v%d, 3, v5' % (T + 1))
        a('s_and_b32 s7, s%d, 2' % S_CW)
        a('s_mul_i32 s7, s7, 1152')
        a('s_and_b32 s%d, s%d, 4' % (sOff, S_CW))
        a('s_lshl_b32 s%d, s%d, 6' % (sOff, sOff))
        a('s_add_u32 s7, s7, s%d' % sOff)
        a('s_lshl_b32 s%d, s%d, 7' % (sOff, sHh))
        a('s_add_u32 s7, s7, s%d' % sOff)
        a('s_add_u32 s7, s7, 0x%x' % CDB)
        a('v_add_u32 v5, s7, v5')
        a('v_and_b32 v6, 7, v1')
        a('v_mul_u32_u24 v6, 576, v6')
        a('v_lshl_add_u32 v6, v2, 4, v6')
        a('v_add_u32 v6, 0x%x, v6' % CDB)
        a('s_and_b32 s7, s%d, 3' % sIdx)
        a('s_lshl_b32 s7, s7, 3')
        a('s_add_u32 s7, s7, s%d' % S_CW)
        a('s_lshl_b32 s7, s7, 4')
        a('s_add_u32 s7, s7, s%d' % sX)
        a('s_lshl_b32 s7, s7, 8')
        a('s_add_u32 s7, s7, 0x%x' % WS_YB)
        a('v_lshl_add_u32 v7, v%d, 6, s7' % T)
        a('v_lshl_add_u32 v7, v2, 4, v7')
        a('v_cmp_gt_u32 %s, 4, v3' % sp(S_MK))
        a('v_bfe_u32 v8, v1, 2, 3')
        a('v_xor_b32 v8, s%d, v8' % S_CW)
        a('v_lshlrev_b32 v8, 5, v8')
        a('v_lshrrev_b32 v%d, 2, v1' % (T + 1))
        a('v_lshl_add_u32 v8, v%d, 8, v8' % (T + 1))
        a('v_lshl_add_u32 v8, v%d, 3, v8' % T)
        self.lds_wait(LAND, PWB + 256 + 64, T + 2, T + 3, sleep=1)
        for ks in range(8):
            a('ds_read_b64_tr_b16 v[%d:%d], v8 offset:%d' % (FO + 4 * ks, FO + 4 * ks + 1, ks * 8192))
            a('ds_read_b64_tr_b16 v[%d:%d], v8 offset:%d' % (FO + 4 * ks + 2, FO + 4 * ks + 3, ks * 8192 + 4096))
        self.stamp(12)
        self.mpoll(1, lambda i: a('buffer_load_dwordx4 %s, v4, %s, 0 offen sc1 nt' % (vr(G, 4), srd(SRD_WS))),
                   lambda i: G + 2, S_MK2, 1)
        a('ds_write_b64 v5, v[%d:%d]' % (G, G + 1))
        self.stamp(13)
        self.sync(T, T + 1)
        for ks in range(8):
            a('ds_read_b128 %s, v6 offset:%d' % (vr(OP + 4 * ks, 4), ks * 64))
        for ks in range(8):
            a('s_waitcnt lgkmcnt(%d)' % (7 - ks))
            a('v_mfma_f32_16x16x32_bf16 v[12:15], %s, %s, %s' % (
                vr(FO + 4 * ks, 4), vr(OP + 4 * ks, 4), '0' if ks == 0 else 'v[12:15]'))
        self.ror('v_add_f32', range(12, 16), [4])
        a('v_cvt_pk_bf16_f32 v%d, v12, v13' % G)
        a('v_cvt_pk_bf16_f32 v%d, v14, v15' % (G + 1))
        a('s_mov_b64 exec, %s' % sp(S_MK))
        a('buffer_store_dwordx4 %s, v7, %s, 0 offen sc1' % (vr(G, 4), srd(SRD_WS)))
        a('s_mov_b64 exec, -1')
        self.stamp(14)
        a('s_cmp_lt_u32 s%d, 4' % S_CW)
        a('s_cbranch_scc1 %s' % ('L_FIN' if o.dev else 'L_END'))
        self.end_red()

    def build(self):
        a = self.a
        hdr = open(os.path.join(os.path.dirname(os.path.abspath(__file__)), '..', NAME + '.s.ref')).read()
        head = []
        for line in hdr.split('\n'):
            if line.startswith('; @launch'):
                head.append('; @launch grid=(256,1,1) block=(576,1,1) lds=%d' % LDS_BYTES)
            elif line.startswith(';'):
                head.append(line)
            else:
                break
        a.raw('\n'.join(head))
        a.raw('.amdgcn_target "amdgcn-amd-amdhsa--gfx950"\n.text\n.globl %s_kernel\n.p2align 8\n'
              '.type %s_kernel,@function\n%s_kernel:' % (NAME, NAME, NAME))
        self.entry()
        self.prologue()
        self.loader()
        self.side()
        self.a_att()
        self.a_svc()
        self.q_abs()
        self.e_svc()
        self.b_att()
        for f in self.tail:
            f()
        if self.o.dev:
            a.label('L_FIN')
            if self.o.probe:
                self.mk_srd(SRD_DBG, P_DBG, 256)
                a('v_readlane_b32 s60, v%d, 57' % V_TS)
                if self.o.pxc >= 0:
                    a('s_and_b32 s7, s2, 7')
                    a('s_cmp_lg_u32 s7, %d' % self.o.pxc)
                    a('s_cbranch_scc1 L_END')
                if self.o.pcl >= 0:
                    a('s_lshr_b32 s61, s%d, 1' % S_R)
                    a('s_sub_u32 s61, s61, 1')
                    a('s_max_i32 s61, s61, 0')
                    a('s_lshl_b32 s61, s61, 2')
                    a('s_lshr_b32 s7, s%d, 2' % S_CW)
                    a('s_min_u32 s7, s7, 2')
                    a('s_add_u32 s61, s61, s7')
                    a('s_cmp_lg_u32 s61, %d' % self.o.pcl)
                    a('s_cbranch_scc1 L_END')
                    a('v_readlane_b32 s60, v%d, %d' % (V_TS, 2 * self.o.pix))
                    a('s_cmp_eq_u32 s60, 0')
                    a('s_cbranch_scc1 L_END')
                a.label('L_PW')
                a('s_sleep 4')
                a('s_memrealtime s[62:63]')
                a('s_waitcnt lgkmcnt(0)')
                a('s_sub_u32 s62, s62, s60')
                a('s_cmp_lt_u32 s62, %d' % (5000 if self.o.probe == 1 else self.o.probe))
                a('s_cbranch_scc1 L_PW')
                if self.o.probe > 1:
                    a('s_endpgm')
                a('v_mov_b32 v2, 0x1000')
                a('s_lshr_b32 s61, s%d, 1' % S_R)
                a('s_sub_u32 s61, s61, 1')
                a('s_max_i32 s61, s61, 0')
                a('s_lshl_b32 s61, s61, 2')
                a('s_lshr_b32 s7, s%d, 2' % S_CW)
                a('s_min_u32 s7, s7, 2')
                a('s_add_u32 s61, s61, s7')
                for cls, st, w in ((1, 2, 4), (5, 5, 5), (8, 8, 6), (8, 9, 7), (8, 11, 8), (5, 13, 9), (2, 4, 10), (6, 4, 11),
                                   (2, 6, 12), (10, 6, 13), (2, 2, 14)):
                    a('s_cmp_eq_u32 s61, %d' % cls)
                    L = a.uniq('PB')
                    a('s_cbranch_scc0 %s' % L)
                    a('s_mov_b32 s7, %d' % (4 * w))
                    a('v_writelane_b32 v2, s7, %d' % (2 * st))
                    a.label(L)
                L = a.uniq('PB')
                a('s_cmp_lg_u32 s%d, 8' % S_WAVE)
                a('s_cbranch_scc1 %s' % L)
                a('s_mov_b32 s7, 12')
                a('v_writelane_b32 v2, s7, 57')
                a('s_not_b32 s60, s60')
                a('v_writelane_b32 v%d, s60, 59' % V_TS)
                a('s_mov_b32 s7, 8')
                a('v_writelane_b32 v2, s7, 59')
                a('s_cmp_lg_u32 s61, 2')
                a('s_cbranch_scc1 %s' % L)
                a('v_readlane_b32 s60, v%d, 8' % V_TS)
                a('s_not_b32 s60, s60')
                a('v_writelane_b32 v%d, s60, 61' % V_TS)
                a('s_mov_b32 s7, 60')
                a('v_writelane_b32 v2, s7, 61')
                a.label(L)
                a('buffer_atomic_umax v%d, v2, %s, 0 offen' % (V_TS, srd(SRD_DBG)))
                a('s_endpgm')
            a('s_mul_i32 s7, s2, 12')
            a('s_add_u32 s%d, s%d, 1' % (S_CW, S_CW))
            a('s_cmp_eq_u32 s%d, 8' % S_WAVE)
            a('s_cselect_b32 s%d, 0, s%d' % (S_CW, S_CW))
            a('s_add_u32 s7, s7, s%d' % S_CW)
            a('s_lshl_b32 s7, s7, 8')
            a('s_add_u32 s7, s7, 0x%x' % WS_TS)
            a('v_lshl_add_u32 v2, v1, 2, s7')
            a('buffer_store_dword v%d, v2, %s, 0 offen' % (V_TS, srd(SRD_WS)))
            if self.o.flow:
                a('s_cmp_lg_u32 s%d, 8' % S_WAVE)
                a('s_cbranch_scc1 L_END')
                a('buffer_store_dword v165, v2, %s, 0 offen offset:2304' % srd(SRD_WS))
        a.label('L_END')
        a('s_endpgm')
        a.raw('''.section .rodata,"a"
.p2align 6
.amdhsa_kernel %s_kernel
  .amdhsa_next_free_vgpr 168
  .amdhsa_next_free_sgpr 102
  .amdhsa_accum_offset 168
  .amdhsa_group_segment_fixed_size 0
  .amdhsa_kernarg_size 112
  .amdhsa_user_sgpr_count 2
  .amdhsa_user_sgpr_kernarg_segment_ptr 1
  .amdhsa_system_sgpr_workgroup_id_x 1
  .amdhsa_float_denorm_mode_32 3
.end_amdhsa_kernel
''' % NAME)
        return a.text()


if __name__ == '__main__':
    opt = Opt()
    out = os.path.join(os.path.dirname(os.path.abspath(__file__)), '..', NAME + '.s')
    for arg in sys.argv[1:]:
        if arg.startswith('out='):
            out = arg[4:]
        else:
            k, v = arg.split('=')
            assert hasattr(opt, k), k
            setattr(opt, k, int(v))
    g = Gen(opt)
    txt = g.build()
    open(out, 'w').write(txt)
    print('wrote', out, len(txt), 'bytes; auto nops:', g.a.nops)
```
